```python
import torch

def _softmax(x, axis=-1):
    return torch.softmax(x, dim=axis)
def _gelu(x):
    return torch.nn.functional.gelu(x, approximate="tanh")
def _silu(x):
    return torch.nn.functional.silu(x)
def _sigmoid(x):
    return torch.sigmoid(x)
def _layernorm(x, axis=-1, eps=1e-5):
    m = x.mean(dim=axis, keepdim=True)
    v = x.var(dim=axis, keepdim=True, unbiased=False)
    return (x - m) / torch.sqrt(v + eps)
def _scatter_add(tgt, idx, src, axis=0):
    return tgt.clone().index_add_(axis, idx, src)
def _segment_sum(src, seg, n):
    out = torch.zeros((n,) + src.shape[1:], dtype=src.dtype)
    return out.index_add_(0, seg, src)
def _pad(x, pw):
    flat = tuple(v for pair in reversed(pw) for v in pair)
    return torch.nn.functional.pad(x, flat)

kernel_name = 'concat_heads__ssm_conv_s4d__ssm_conv_s4__prompt'

def setup_inputs():

    _w = (lambda a: (lambda t: t.to(torch.bfloat16) if t.is_floating_point() else t)(torch.as_tensor(a)))
    def _A_setup():
        Bsz, L, D, N = 1, 2048, 512, 128
        return {
            "u": _w((lambda *s: torch.randn(*s, dtype=torch.bfloat16) * 0.05)(Bsz, L, D)),
            "log_A_real": _w((lambda *s: torch.randn(*s, dtype=torch.bfloat16) * 6.4)(D, N) * 0.5),
            "A_imag": _w((lambda *s: torch.randn(*s, dtype=torch.bfloat16) * 0.05)(D, N) * 3.14),
            "C_real": _w((lambda *s: torch.randn(*s, dtype=torch.bfloat16) * 0.05)(D, N) / N ** 0.5),
            "C_imag": _w((lambda *s: torch.randn(*s, dtype=torch.bfloat16) * 0.05)(D, N) / N ** 0.5),
            "log_dt": _w((lambda *s: torch.randn(*s, dtype=torch.bfloat16) * 0.05)(D) * 0.5 - 4.0),
            "D_skip": _w((lambda *s: torch.randn(*s, dtype=torch.bfloat16) * 0.05)(D)),
        }
    _A_in = _A_setup()

    def _B_setup():
        B, L, D, N = 1, 2048, 512, 128
        A_re = -(lambda _x: torch.exp(torch.as_tensor(_x)))((lambda *s: torch.randn(*s, dtype=torch.bfloat16) * 6.4)(D, N))
        A_im = torch.pi * (lambda *s: torch.randn(*s, dtype=torch.bfloat16) * 0.05)(D, N)
        B_re = (lambda *s: torch.randn(*s, dtype=torch.bfloat16) * 0.1)(D, N)
        B_im = (lambda *s: torch.randn(*s, dtype=torch.bfloat16) * 0.1)(D, N)
        C_re = (lambda *s: torch.randn(*s, dtype=torch.bfloat16) * 0.1)(D, N)
        C_im = (lambda *s: torch.randn(*s, dtype=torch.bfloat16) * 0.1)(D, N)
        log_dt = (lambda *s: torch.randn(*s, dtype=torch.bfloat16) * 0.05)(D) * 0.5 - 4.0
        Dskip = (lambda *s: torch.randn(*s, dtype=torch.bfloat16) * 0.05)(D)
        return {
            "u": _w((lambda *s: torch.randn(*s, dtype=torch.bfloat16) * 0.05)(B, L, D)),
            "A_re": _w(A_re),
            "A_im": _w(A_im),
            "B_re": _w(B_re),
            "B_im": _w(B_im),
            "C_re": _w(C_re),
            "C_im": _w(C_im),
            "log_dt": _w(log_dt),
            "Dskip": _w(Dskip),
        }
    _B_in = _B_setup()

    return {
        "A_u": _A_in["u"],
        "A_log_A_real": _A_in["log_A_real"],
        "A_A_imag": _A_in["A_imag"],
        "A_C_real": _A_in["C_real"],
        "A_C_imag": _A_in["C_imag"],
        "A_log_dt": _A_in["log_dt"],
        "A_D_skip": _A_in["D_skip"],
        "B_u": _B_in["u"],
        "B_A_re": _B_in["A_re"],
        "B_A_im": _B_in["A_im"],
        "B_B_re": _B_in["B_re"],
        "B_B_im": _B_in["B_im"],
        "B_C_re": _B_in["C_re"],
        "B_C_im": _B_in["C_im"],
        "B_log_dt": _B_in["log_dt"],
        "B_Dskip": _B_in["Dskip"],
    }

def reference(A_u, A_log_A_real, A_A_imag, A_C_real, A_C_imag, A_log_dt, A_D_skip, B_u, B_A_re, B_A_im, B_B_re, B_B_im, B_C_re, B_C_im, B_log_dt, B_Dskip):
    def _A_ref(u, log_A_real, A_imag, C_real, C_imag, log_dt, D_skip):
        L = u.shape[1]
        dt = torch.exp(log_dt)
        A = -torch.exp(log_A_real) + 1j * A_imag
        C = (C_real + 1j * C_imag) * dt[:, None]
        pos = (lambda x, dt: x.to(dt))(torch.arange(L), log_dt.dtype)
        P = torch.exp((A * dt[:, None])[:, :, None] * pos[None, None, :])
        K = 2.0 * torch.einsum("dn,dnl->dl", C, P).real
        L2 = 2 * L
        u_t = (lambda x, *d: x.permute(*d))(u, 0, 2, 1)
        Kf = (lambda x, *a, **k: torch.fft.rfft(x.float(), *a, **k))(K, L2)
        Uf = (lambda x, *a, **k: torch.fft.rfft(x.float(), *a, **k))(u_t, L2)
        y = (lambda x, *a, **k: torch.fft.irfft(x, *a, **k).to(torch.bfloat16))(Uf * Kf[None, :, :], L2)[:, :, :L]
        y = (lambda x, *d: x.permute(*d))(y, 0, 2, 1)
        return y + u * D_skip[None, None, :]

    def _B_ref(u, A_re, A_im, B_re, B_im, C_re, C_im, log_dt, Dskip):
        Bsz, L, D = u.shape
        dt = torch.exp(log_dt)[:, None]
        A = A_re + 1j * A_im
        Bc = B_re + 1j * B_im
        Cc = C_re + 1j * C_im
        logdA = dt * A
        dB = dt * Bc
        l = (lambda x, dt: x.to(dt))(torch.arange(L), A_re.dtype)
        P = torch.exp(logdA[:, :, None] * l[None, None, :])
        K = torch.einsum("dn,dnl,dn->dl", Cc, P, dB).real
        L2 = 2 * L
        Kp = _pad(K, ((0, 0), (0, L)))
        up = (lambda x, *d: x.permute(*d))(u, 0, 2, 1)
        up = _pad(up, ((0, 0), (0, 0), (0, L)))
        Kf = (lambda x, axes=(-2,-1): torch.fft.rfft2(x.float(), dim=axes))(Kp[:, None, :], axes=(-2, -1))
        Uf = (lambda x, axes=(-2,-1): torch.fft.rfft2(x.float(), dim=axes))(up[:, :, None, :], axes=(-2, -1))
        Yf = Uf * Kf[None, :, :, :]
        y = (lambda x, s, axes=(-2,-1): torch.fft.irfft2(x, s=s, dim=axes).to(torch.bfloat16))(Yf, (1, L2), axes=(-2, -1))[:, :, 0, :L]
        y = (lambda x, *d: x.permute(*d))(y, 0, 2, 1) + u * Dskip[None, None, :]
        return y

    a = _A_ref(A_u, A_log_A_real, A_A_imag, A_C_real, A_C_imag, A_log_dt, A_D_skip)
    b = _B_ref(B_u, B_A_re, B_A_im, B_B_re, B_B_im, B_C_re, B_C_im, B_log_dt, B_Dskip)
    return torch.concatenate([a, b], axis=-1)
```

```python
import sys
NAME = "concat_heads__ssm_conv_s4d__ssm_conv_s4__prompt"
def desc(name, vgpr=64, sgpr=96):
    acc = (vgpr + 3)//4*4
    return f""".section .rodata,"a"
.p2align 6
.amdhsa_kernel {name}
  .amdhsa_next_free_vgpr {vgpr}
  .amdhsa_next_free_sgpr {sgpr}
  .amdhsa_accum_offset {acc}
  .amdhsa_group_segment_fixed_size 0
  .amdhsa_kernarg_size 152
  .amdhsa_user_sgpr_count 2
  .amdhsa_user_sgpr_kernarg_segment_ptr 1
  .amdhsa_system_sgpr_workgroup_id_x 1
.end_amdhsa_kernel
.text
"""
def kern(name, body, vgpr=64):
    return f".globl {name}\n.p2align 8\n.type {name},@function\n{name}:\n{body}\n    s_endpgm\n" + desc(name, vgpr)
def srd(d, b, n):
    return f"    s_mov_b32 s{d}, s{b}\n    s_mov_b32 s{d+1}, s{b+1}\n    s_mov_b32 s{d+2}, {n}\n    s_mov_b32 s{d+3}, 0x20000\n"
KGEN = """
    s_cmp_ge_u32 s2, 1024
    s_cbranch_scc1 L_kg_end
    s_load_dwordx16 s[4:19], s[0:1], 0
    s_load_dwordx16 s[20:35], s[0:1], 64
    s_load_dwordx2 s[36:37], s[0:1], 144
    s_waitcnt lgkmcnt(0)
    s_and_b32 s38, s2, 511
    s_lshl_b32 s39, s38, 8
    s_lshl_b32 s40, s38, 1
    v_and_b32 v1, 127, v0
    v_lshlrev_b32 v2, 1, v1
    v_add_u32 v2, s39, v2
    v_mov_b32 v3, s40
    s_mov_b32 s60, 0x3fb8aa3b
    s_cmp_ge_u32 s2, 512
    s_cbranch_scc1 L_kg_B
    global_load_ushort v4, v2, s[6:7]
    global_load_ushort v5, v2, s[8:9]
    global_load_ushort v6, v2, s[10:11]
    global_load_ushort v7, v2, s[12:13]
    global_load_ushort v8, v3, s[14:15]
    s_waitcnt vmcnt(0)
    v_lshlrev_b32 v4, 16, v4
    v_lshlrev_b32 v6, 16, v6
    v_lshlrev_b32 v7, 16, v7
    v_mul_f32 v4, s60, v4
    v_exp_f32 v4, v4
    s_nop 1
    v_cvt_pk_bf16_f32 v4, v4, v4
    v_lshlrev_b32 v4, 16, v4
    v_sub_f32 v4, 0, v4
    v_add_f32 v6, v6, v6
    v_add_f32 v7, v7, v7
    s_branch L_kg_C
L_kg_B:
    global_load_ushort v4, v2, s[20:21]
    global_load_ushort v5, v2, s[22:23]
    global_load_ushort v10, v2, s[24:25]
    global_load_ushort v11, v2, s[26:27]
    global_load_ushort v12, v2, s[28:29]
    global_load_ushort v13, v2, s[30:31]
    global_load_ushort v8, v3, s[32:33]
    s_waitcnt vmcnt(0)
    v_lshlrev_b32 v4, 16, v4
    v_lshlrev_b32 v10, 16, v10
    v_lshlrev_b32 v11, 16, v11
    v_lshlrev_b32 v12, 16, v12
    v_lshlrev_b32 v13, 16, v13
    v_mul_f32 v6, v11, v13
    v_fma_f32 v6, v10, v12, -v6
    v_mul_f32 v7, v10, v13
    v_fma_f32 v7, v11, v12, v7
L_kg_C:
    v_lshlrev_b32 v5, 16, v5
    v_lshlrev_b32 v8, 16, v8
    v_mul_f32 v8, s60, v8
    v_exp_f32 v8, v8
    s_nop 1
    v_cvt_pk_bf16_f32 v8, v8, v8
    v_lshlrev_b32 v8, 16, v8
    v_mul_f32 v4, v4, v8
    v_mul_f32 v5, v5, v8
    v_mul_f32 v6, v6, v8
    v_mul_f32 v7, v7, v8
    v_mul_f32 v4, s60, v4
    v_mul_f32 v5, 0.15915494, v5
    v_lshlrev_b32 v9, 4, v1
    ds_write_b128 v9, v[4:7]
    s_waitcnt lgkmcnt(0)
    s_barrier
""" + "".join(f"""    v_add_u32 v{20+i}, {256*i}, v0
    v_cvt_f32_u32 v{20+i}, v{20+i}
    v_cvt_pk_bf16_f32 v{20+i}, v{20+i}, v{20+i}
    v_lshlrev_b32 v{20+i}, 16, v{20+i}
    v_mov_b32 v{30+i}, 0
""" for i in range(8)) + """
    v_mov_b32 v9, 0
    s_mov_b32 s41, 0
L_kg_loop:
    ds_read_b128 v[4:7], v9
    v_add_u32 v9, 16, v9
    s_waitcnt lgkmcnt(0)
""" + "".join(f"""    v_mul_f32 v10, v4, v{20+i}
    v_mul_f32 v11, v5, v{20+i}
    v_fract_f32 v11, v11
    v_exp_f32 v10, v10
    v_cos_f32 v12, v11
    v_sin_f32 v13, v11
    s_nop 0
    v_mul_f32 v12, v12, v6
    v_fma_f32 v12, -v13, v7, v12
    v_fma_f32 v{30+i}, v10, v12, v{30+i}
""" for i in range(8)) + """
    s_add_u32 s41, s41, 1
    s_cmp_lt_u32 s41, 128
    s_cbranch_scc1 L_kg_loop
    v_lshlrev_b32 v9, 12, v0
    s_lshl_b32 s42, s2, 2
    v_add_u32 v9, s42, v9
""" + "".join(f"    global_store_dword v9, v{30+i}, s[36:37]\n    v_add_u32 v9, 0x100000, v9\n" for i in range(8)) + """
    s_waitcnt vmcnt(0)
L_kg_end:
"""
CONV = """
    s_cmp_ge_u32 s2, 1024
    s_cbranch_scc1 L_cv_end
    s_load_dwordx2 s[4:5], s[0:1], 0
    s_load_dwordx2 s[6:7], s[0:1], 56
    s_load_dwordx2 s[8:9], s[0:1], 48
    s_load_dwordx2 s[10:11], s[0:1], 120
    s_load_dwordx2 s[12:13], s[0:1], 128
    s_load_dwordx2 s[14:15], s[0:1], 144
    s_waitcnt lgkmcnt(0)
    s_and_b32 s16, s2, 3          ; channel group
    s_lshr_b32 s17, s2, 2         ; l block
    s_lshl_b32 s17, s17, 3        ; l0
    s_cmp_ge_u32 s16, 2
    s_cselect_b32 s20, s6, s4
    s_cselect_b32 s21, s7, s5
    s_cselect_b32 s8, s10, s8
    s_cselect_b32 s9, s11, s9
    s_mov_b32 s22, 0x200000
    s_mov_b32 s23, 0x20000
""" + srd(24, 14, 0x800000) + """
    s_lshl_b32 s18, s16, 8
    v_add_u32 v1, s18, v0         ; ch
    v_and_b32 v2, 511, v1
    v_lshlrev_b32 v2, 1, v2       ; u col byte
    v_lshlrev_b32 v3, 2, v1       ; K col byte
    global_load_ushort v4, v2, s[8:9]
""" + "".join(f"    v_mov_b32 v{30+i}, 0\n    v_mov_b32 v{10+i}, 0\n" for i in range(8)) + """
    ; loop over input row r from l0+7 down to 0 ; K index for output i: l0+i-r ; window v10..v17 = K[l0+i-r]
    s_add_u32 s28, s17, 7         ; r
    s_mov_b32 s29, 0              ; j = l0+7-r
L_cv_loop:
    s_lshl_b32 s30, s28, 10
    s_lshl_b32 s31, s29, 12
    buffer_load_ushort v5, v2, s[20:23], s30 offen
    buffer_load_dword v6, v3, s[24:27], s31 offen
""" + "".join(f"    v_mov_b32 v{10+i}, v{11+i}\n" for i in range(7)) + """
    s_waitcnt vmcnt(0)
    v_mov_b32 v17, v6
    v_lshlrev_b32 v5, 16, v5
""" + "".join(f"    v_fma_f32 v{30+i}, v{10+i}, v5, v{30+i}\n" for i in range(8)) + """
    s_add_u32 s29, s29, 1
    s_sub_u32 s28, s28, 1
    s_cbranch_scc0 L_cv_loop
    v_lshlrev_b32 v4, 16, v4
    v_lshlrev_b32 v7, 1, v1
    s_lshl_b32 s30, s17, 10
    s_lshl_b32 s31, s17, 11
    v_add_u32 v7, s31, v7
""" + "".join(f"""    buffer_load_ushort v5, v2, s[20:23], s30 offen
    s_add_u32 s30, s30, 1024
    s_waitcnt vmcnt(0)
    v_lshlrev_b32 v5, 16, v5
    v_fma_f32 v5, v5, v4, v{30+i}
    v_cvt_pk_bf16_f32 v5, v5, v5
    global_store_short v7, v5, s[12:13]
    v_add_u32 v7, 2048, v7
""" for i in range(8)) + """
    s_waitcnt vmcnt(0)
L_cv_end:
"""
def probe(off, n, stride):
    return f"""
    s_cmp_ge_u32 s2, 1
    s_cbranch_scc1 L_pr_end
    s_load_dwordx2 s[4:5], s[0:1], {off}
    s_waitcnt lgkmcnt(0)
    v_mov_b32 v1, 0
    s_mov_b32 s6, 0
L_pr_loop:
    global_load_dword v2, v1, s[4:5]
    s_waitcnt vmcnt(0)
    v_add_u32 v1, {stride}, v1
    s_add_u32 s6, s6, 1
    s_cmp_lt_u32 s6, {n}
    s_cbranch_scc1 L_pr_loop
L_pr_end:
"""
def write(path, pr):
    s = ""
    if pr: s += "; @launch kernel=probe_kernel grid=(1,1,1) block=(64,1,1) lds=0\n"
    s += "; @launch kernel=kgen_kernel grid=(1024,1,1) block=(256,1,1) lds=2048\n"
    s += f"; @launch kernel={NAME}_kernel grid=(1024,1,1) block=(256,1,1) lds=0\n"
    s += '.amdgcn_target "amdgcn-amd-amdhsa--gfx950"\n.text\n'
    if pr: s += kern("probe_kernel", pr)
    s += kern("kgen_kernel", KGEN) + kern(NAME + "_kernel", CONV)
    open(path, 'w').write(s)
write('k/naive.s', None)
write('k/naive_p0.s', probe(0, 1, 1024))
write('k/naive_pu.s', probe(0, 2000, 1024))
write('k/naive_pu2.s', probe(56, 2000, 1024))
write('k/naive_pp.s', probe(8, 1000, 128))
write('k/naive_pw.s', probe(144, 2000, 1024))
```

```python
import sys
sys.path.insert(0, 'work')
import gen_naive as gn
NAME = gn.NAME
HEAD = """
    s_memtime s[12:13]
    s_cmp_ge_u32 s2, 256
    s_cbranch_scc1 L_pr_end
    s_load_dwordx16 s[64:79], s[0:1], 0
    s_load_dwordx16 s[80:95], s[0:1], 64
    v_lshrrev_b32 v50, 6, v0
    v_and_b32 v51, 63, v0
    s_nop 1
    v_readfirstlane_b32 s20, v50
    s_waitcnt lgkmcnt(0)
    s_and_b32 s21, s2, 7
    s_lshr_b32 s22, s2, 3
    s_cmp_ge_u32 s21, 4
    s_cselect_b32 s8, s78, s64
    s_cselect_b32 s9, s79, s65
    s_cselect_b64 s[24:25], s[80:81], s[66:67]
    s_cselect_b64 s[26:27], s[82:83], s[68:69]
    s_cselect_b64 s[28:29], s[84:85], s[70:71]
    s_cselect_b64 s[30:31], s[86:87], s[72:73]
    s_cselect_b64 s[32:33], s[88:89], s[70:71]
    s_cselect_b64 s[34:35], s[90:91], s[72:73]
    s_mov_b32 s10, 0x200000
    s_mov_b32 s11, 0x20000
    s_and_b32 s51, s22, 1            ; role
    s_lshr_b32 s45, s22, 1
    s_lshl_b32 s45, s45, 4
    s_lshl_b32 s47, s21, 8
    s_add_u32 s23, s47, s45
    s_and_b32 s22, s23, 1023
    s_and_b32 s49, s47, 1023
"""
PARAMS = """
    s_lshr_b32 s60, s22, 1
    s_add_u32 s60, s60, s20
    s_lshl_b32 s60, s60, 8
    v_lshlrev_b32 v3, 2, v51
    v_add_u32 v3, s60, v3
""" + "".join(f"    global_load_dword v{40+a}, v3, s[{24+2*a}:{25+2*a}]\n" for a in range(6))
PF = """
    s_lshr_b32 s50, s2, 3
    s_lshl_b32 s50, s50, 10
    s_add_u32 s50, s50, s49
    s_lshl_b32 s61, s20, 18
    s_add_u32 s50, s50, s61
    v_lshrrev_b32 v5, 1, v51
    v_lshlrev_b32 v5, 15, v5
    v_and_b32 v4, 1, v51
    v_lshl_add_u32 v5, v4, 7, v5
    s_mov_b64 exec, 0xffff
    buffer_load_dword v9, v5, s[8:11], s50 offen
    s_mov_b64 exec, -1
"""
ULD = """
    v_lshlrev_b32 v1, 11, v0
    buffer_load_dwordx4 v[12:15], v1, s[8:11], s22 offen
    buffer_load_dwordx4 v[16:19], v1, s[8:11], s22 offen offset:1024
    s_add_u32 s44, s22, 0x100000
    s_cmp_lt_u32 s20, 2
    s_cselect_b32 s62, 1, s51
    s_cmp_eq_u32 s62, 0
    s_cbranch_scc1 L_no2
    buffer_load_dwordx4 v[20:23], v1, s[8:11], s44 offen
    buffer_load_dwordx4 v[24:27], v1, s[8:11], s44 offen offset:1024
L_no2:
"""
W0 = "    s_waitcnt vmcnt(0)\n"
BAR = "    s_barrier\n"
def STAMP(sub=None):
    return """
    s_memtime s[14:15]
    s_waitcnt lgkmcnt(0)
    s_sub_u32 s14, s14, s12
    s_mul_i32 s14, s14, 10
    s_memrealtime s[16:17]
    s_waitcnt lgkmcnt(0)
L_spin:
    s_sleep 8
    s_memrealtime s[18:19]
    s_waitcnt lgkmcnt(0)
    s_sub_u32 s18, s18, s16
    s_cmp_lt_u32 s18, s14
    s_cbranch_scc1 L_spin
    s_waitcnt vmcnt(0)
L_pr_end:
"""
FMA = "".join(f"    v_fma_f32 v{8+i%16}, v{30+i%8}, v{40+i%8}, v{8+i%16}\n" for i in range(2048))
COAL = """
    v_lshlrev_b32 v1, 4, v0
    s_and_b32 s44, s2, 127
    s_lshl_b32 s44, s44, 14
    s_cmp_ge_u32 s2, 128
    s_cselect_b32 s8, s78, s64
    s_cselect_b32 s9, s79, s65
    buffer_load_dwordx4 v[12:15], v1, s[8:11], s44 offen
    s_add_u32 s44, s44, 8192
    buffer_load_dwordx4 v[16:19], v1, s[8:11], s44 offen
"""
def write(path, body, blk=512):
    s = f"; @launch kernel=probe_kernel grid=(256,1,1) block=({blk},1,1) lds=0\n"
    s += "; @launch kernel=kgen_kernel grid=(1024,1,1) block=(256,1,1) lds=2048\n"
    s += f"; @launch kernel={NAME}_kernel grid=(1024,1,1) block=(256,1,1) lds=0\n"
    s += '.amdgcn_target "amdgcn-amd-amdhsa--gfx950"\n.text\n'
    s += gn.kern("probe_kernel", body).replace('next_free_sgpr 96', 'next_free_sgpr 102')
    s += gn.kern("kgen_kernel", gn.KGEN) + gn.kern(NAME + "_kernel", gn.CONV)
    open(path, 'w').write(s)
V = {
 'karg': HEAD + STAMP(),
 'params': HEAD + PARAMS + W0 + STAMP(),
 'coal': HEAD + COAL + W0 + STAMP(),
 'pfd1': HEAD + PARAMS + PF + W0 + ULD + W0 + STAMP(),
 'pf': HEAD + PARAMS + PF + W0 + STAMP(),
 'fma': HEAD + ".p2align 3\n" + FMA + STAMP(),
}
if __name__ == '__main__':
    for n, b in V.items():
        write(f'k/pr_{n}.s', b, 256 if n == 'fma' else 512)
```

```python
import re, subprocess, os

REG_RE = re.compile(r'(?<![\w.])([vs])(?:\[(\d+):(\d+)\]|(\d+))(?![\w])')
TRANS = ('v_exp_f32', 'v_log_f32', 'v_rcp_f32', 'v_rsq_f32', 'v_sqrt_f32', 'v_sin_f32', 'v_cos_f32')


def regs_of(op):
    out = set()
    for m in REG_RE.finditer(op):
        k = m.group(1)
        if m.group(4) is not None:
            out.add((k, int(m.group(4))))
        else:
            for r in range(int(m.group(2)), int(m.group(3)) + 1):
                out.add((k, r))
    for sp in ('vcc', 'exec', 'm0'):
        if re.search(r'(?<![\w])' + sp + r'(_lo|_hi)?(?![\w])', op):
            out.add((sp, 0))
    return out


def split_ops(s):
    ops, depth, cur = [], 0, ''
    for ch in s:
        if ch == '[':
            depth += 1
        if ch == ']':
            depth -= 1
        if ch == ',' and depth == 0:
            ops.append(cur.strip())
            cur = ''
        else:
            cur += ch
    if cur.strip():
        ops.append(cur.strip())
    return ops


class Ins:
    def __init__(self, text, cond=None, tag=None):
        self.text = text.strip()
        self.cond = cond
        self.tag = tag
        self.size = None
        self.hot = False
        t = self.text.split(';')[0].strip()
        self.label = t.endswith(':')
        self.directive = t.startswith('.') and not self.label
        self.rd, self.wr = set(), set()
        self.srcc = set()
        self.kind = 'other'
        if self.label or self.directive or not t:
            self.mn = ''
            self.kind = 'none'
            return
        p = t.split(None, 1)
        self.mn = mn = p[0]
        ops = split_ops(p[1]) if len(p) > 1 else []
        R = [regs_of(o) for o in ops]
        allr = set().union(*R) if R else set()
        rest = set().union(*R[1:]) if len(R) > 1 else set()
        if mn.startswith('v_mfma'):
            self.kind = 'mfma'
            self.wr = R[0]
            self.rd = rest
            self.srcab = R[1] | R[2]
            self.srcc = R[3]
            self.passes = 8 if '32x32' in mn else 4
        elif mn.startswith('v_'):
            self.kind = 'valu'
            self.wr = set(R[0])
            self.rd = set(rest)
            if mn.startswith(('v_add_co', 'v_addc_co', 'v_sub_co')):
                self.wr |= R[1]
                self.rd = set().union(*R[2:])
            if mn.startswith(('v_fma_mix', 'v_fmac', 'v_writelane')) or 'dpp' in mn:
                self.rd |= R[0]
            if mn.startswith('v_permlane'):
                self.wr = set(allr)
                self.rd = set(allr)
            if mn.startswith('v_swap'):
                self.wr = set(allr)
                self.rd = set(allr)
        elif mn.startswith('ds_'):
            self.kind = 'ds'
            if mn.startswith('ds_read'):
                self.wr = R[0]
                self.rd = rest
            else:
                self.rd = allr
            if 'addtid' in mn:
                self.rd = self.rd | {('m0', 0)}
        elif mn.startswith(('global_', 'buffer_')):
            self.kind = 'vmem'
            if 'wbl2' in mn:
                pass
            elif 'load' in mn:
                self.wr = R[0]
                self.rd = rest
                if 'd16' in mn:
                    self.rd = allr
            else:
                self.rd = allr
                di = 1 if mn.startswith('global_') else 0
                self.stdata = R[di] if ('x3' in mn or 'x4' in mn) else set()
        elif mn.startswith('s_'):
            self.kind = 'salu'
            if mn.startswith(('s_cmp', 's_bitcmp', 's_cbranch', 's_branch', 's_waitcnt', 's_nop', 's_barrier', 's_endpgm', 's_setprio', 's_sleep')):
                self.rd = allr
            else:
                self.wr = R[0] if R else set()
                self.rd = rest
        self.trans = mn.replace('_e32', '').replace('_e64', '') in TRANS

    def states(self):
        if self.kind == 'none':
            return 0
        if self.mn == 's_nop':
            return int(self.text.split()[1]) + 1
        return 1


def need_states(p, c):
    n = 0
    vw = {r for r in p.wr if r[0] == 'v'}
    if p.kind == 'valu':
        if c.kind == 'mfma' and vw & c.rd:
            n = max(n, 2)
        if c.kind == 'valu':
            if 'dpp' in c.mn and vw & c.rd:
                n = max(n, 2)
            if c.mn.startswith('v_permlane') and vw & c.rd:
                n = max(n, 2)
            if c.mn.startswith(('v_readlane', 'v_readfirstlane')) and vw & c.rd:
                n = max(n, 1)
            if p.trans and vw & c.rd:
                n = max(n, 1)
            if p.mn.startswith('v_fma_mix') and vw & (c.rd | c.wr):
                n = max(n, 1)
        if p.trans and c.kind in ('ds', 'vmem') and vw & c.rd:
            n = max(n, 1)
        sw = {r for r in p.wr if r[0] in ('s', 'vcc')}
        if sw & c.rd:
            if c.kind == 'valu':
                n = max(n, 4 if c.mn.startswith(('v_readlane', 'v_writelane')) else 2)
            if c.kind == 'vmem':
                n = max(n, 5)
            if c.kind == 'salu':
                n = max(n, 1)
    if p.kind == 'mfma':
        big = {4: 8, 8: 12}[p.passes]
        if c.kind == 'mfma':
            if p.wr & c.srcab:
                n = max(n, big)
            if p.wr & c.srcc and (p.wr != c.srcc or p.passes != c.passes):
                n = max(n, big - 2)
            if p.wr & c.wr and not (p.wr == c.srcc):
                n = max(n, big - 2)
        elif c.kind in ('valu', 'ds', 'vmem'):
            if p.wr & (c.rd | c.wr):
                n = max(n, big)
        if c.kind == 'valu' and p.srcc & c.wr:
            n = max(n, p.passes - 1)
    if p.kind == 'salu' and ('m0', 0) in p.wr and c.kind == 'ds' and ('m0', 0) in c.rd:
        n = max(n, 1)
    if p.kind == 'vmem' and getattr(p, 'stdata', None) and c.kind in ('valu', 'ds', 'vmem') and p.stdata & c.wr:
        n = max(n, 2)
    return n


class Asm:
    def __init__(self):
        self.ins = []
        self.cond = None
        self.ncond = 0
        self.hot = False
        self.dsq = []
        self.nds = 0
        self.saved = []

    def _emit(self, text, tag=None):
        i = Ins(text, self.cond, tag)
        i.hot = self.hot
        self.ins.append(i)
        return i

    def wait_ds(self, opid):
        idx = [k for k, (i, _) in enumerate(self.dsq) if i == opid]
        if not idx:
            return
        n = min(len(self.dsq) - 1 - idx[0], 15)
        self._emit(f's_waitcnt lgkmcnt({n})')
        self.dsq = self.dsq[len(self.dsq) - n:] if n else []

    def drain_ds(self):
        self._emit('s_waitcnt lgkmcnt(0)')
        self.dsq = []

    def __call__(self, text, tag=None):
        last = None
        for line in text.strip().split('\n'):
            line = line.strip()
            if not line:
                continue
            i = Ins(line)
            touch = i.rd | i.wr
            hit = [oid for oid, d in self.dsq if d & touch]
            if hit:
                self.wait_ds(hit[-1])
            self._emit(line, tag)
            if i.kind == 'ds':
                self.nds += 1
                self.dsq.append((self.nds, set(i.wr)))
                last = self.nds
            if i.mn == 's_waitcnt' and 'lgkmcnt(0)' in line:
                self.dsq = []
        return last

    def cond_begin(self):
        self.ncond += 1
        self.saved.append((self.cond, list(self.dsq)))
        self.cond = self.ncond

    def cond_end(self):
        self.cond, self.dsq = self.saved.pop()

    def hazards(self):
        out = []
        for c in self.ins:
            if c.kind != 'none':
                need = 0
                dist_all = 0
                dist_skip = 0
                for p in reversed(out):
                    if p.mn == 's_endpgm' or (p.mn == 's_branch' and p.cond is None):
                        break
                    foreign = p.cond is not None and p.cond != c.cond
                    d = dist_all if foreign else dist_skip
                    if p.kind != 'none':
                        need = max(need, need_states(p, c) - d)
                    dist_all += p.states()
                    if not foreign:
                        dist_skip += p.states()
                    if dist_skip >= 14:
                        break
                if need > 0:
                    nop = Ins(f's_nop {need - 1}', c.cond)
                    nop.hot = c.hot
                    out.append(nop)
            out.append(c)
        self.ins = out

    def text(self):
        s = ''
        for i in self.ins:
            s += (i.text if (i.label or i.directive) else '    ' + i.text) + '\n'
        return s

    def measure(self):
        src = '.amdgcn_target "amdgcn-amd-amdhsa--gfx950"\n.text\n.p2align 8\nk:\n' + ''.join(
            i.text + '\n' for i in self.ins if not i.directive)
        open('_m.s', 'w').write(src)
        r = subprocess.run(['clang', '-x', 'assembler', '-target', 'amdgcn-amd-amdhsa', '-mcpu=gfx950', '-c', '_m.s', '-o', '_m.o'], capture_output=True, text=True)
        if r.returncode:
            print(r.stderr[:3000])
            raise SystemExit(1)
        d = subprocess.run(['llvm-objdump', '-d', '--mcpu=gfx950', '_m.o'], capture_output=True, text=True).stdout
        sizes = [4 * len(l.split('//')[1].split(':')[1].split('<')[0].split()) for l in d.split('\n') if '//' in l]
        real = [i for i in self.ins if i.kind != 'none']
        assert len(real) == len(sizes), (len(real), len(sizes))
        for i, s in zip(real, sizes):
            i.size = s
        return sum(sizes)

    def align8(self, min_run=3):
        self.measure()
        out, off = [], 0
        last4 = None
        n = len(self.ins)
        for k, i in enumerate(self.ins):
            if i.kind == 'none':
                if i.directive and i.text.startswith('.p2align'):
                    a = 1 << int(i.text.split()[1].rstrip(','))
                    off = (off + a - 1) // a * a
                    last4 = None
                out.append(i)
                continue
            if i.hot and i.size == 8 and off % 8 == 4:
                run = 0
                for j in range(k, n):
                    if self.ins[j].kind == 'none':
                        continue
                    if self.ins[j].size != 8:
                        break
                    run += 1
                if last4 is not None:
                    mn = last4.mn.replace('_e32', '')
                    last4.text = last4.text.replace(last4.mn, mn + '_e64', 1)
                    last4.mn = mn + '_e64'
                    last4.size = 8
                    off += 4
                elif run >= min_run:
                    nop = Ins('s_nop 0', i.cond)
                    nop.size = 4
                    out.append(nop)
                    off += 4
            if i.size == 4:
                ok = i.kind == 'valu' and not i.mn.startswith(('v_readfirstlane', 'v_permlane', 'v_swap', 'v_cndmask', 'v_nop'))
                last4 = i if ok else None
            else:
                last4 = None
            out.append(i)
            off += i.size
        self.ins = out


class Pool:
    def __init__(self, lo, hi):
        self.free = set(range(lo, hi))
        self.hi = 0

    def alloc(self, n=1, align=None):
        align = align or (2 if n > 1 else 1)
        for r in sorted(self.free):
            if r % align == 0 and all(r + k in self.free for k in range(n)):
                for k in range(n):
                    self.free.discard(r + k)
                self.hi = max(self.hi, r + n)
                return r
        return None

    def release(self, r, n=1):
        for k in range(n):
            assert r + k not in self.free, r + k
            self.free.add(r + k)

    def copy(self):
        p = Pool(0, 0)
        p.free = set(self.free)
        p.hi = self.hi
        return p


def vr(r, n=1):
    return f'v{r}' if n == 1 else f'v[{r}:{r + n - 1}]'
```

```python
import sys, struct, math, itertools
sys.path.insert(0, 'work')
from asmlib import *

NAME = "concat_heads__ssm_conv_s4d__ssm_conv_s4__prompt"


def f2u(x):
    return struct.unpack('<I', struct.pack('<f', x))[0]


ROW = 288
STG = 11584
UB0 = 8 * STG
UCH = 4608
TB0 = UB0 + 8 * UCH
TBS = 3168
R2O, R3O = 2400, 2912
LDS = TB0 + 8 * TBS
YT = 640

T1 = [0, 1, 2, 3, 4, 5, 6, 7, 256, 256, 258, 260, 260, 260, 262, 264]
T2 = [4, 516, 520, 1032, 8, 772, 776, 1288, 260, 'z', 'z', 1544, 264, 'z', 'z', 1800]


SLOT = {0: 5, 1: 3, 2: 14, 3: 15, 4: 11, 5: 6, 6: 7, 7: 4, 256: 1, 258: 13, 260: 8, 262: 2, 264: 12, 516: 9, 520: 16,
        1032: 21, 8: 20, 776: 17, 1288: 19, 'z': 22, 1544: 10, 1800: 18, 772: 23, 'M': 0}


class Cfg:
    ts = False
    dump = False
    grp_time = 16
    look = 6
    codepf = True
    upf = True


def gen(cfg):
    a = Asm()
    P = Pool(1, 256)
    nts = [0]

    def stamp():
        if cfg.ts:
            k = nts[0]
            a(f's_memtime s[{64 + 2 * k}:{65 + 2 * k}]')
            nts[0] += 1

    sW, sUCOL, sOCOL, sSTG, sTB, sU, sSEL0, sSEL1 = 32, 33, 34, 35, 36, 37, 38, 39
    sCHI, sCLO, sCX, sSC, sINV, sT0, sT1, sIT = 40, 42, 44, 45, 46, 48, 49, 50
    sHI, sEXA, sU2, sM1, sM2 = 51, 52, 53, 54, 55

    UA = P.alloc(8, 4)
    UBr = P.alloc(8, 4)
    BOX = [P.alloc(4) for _ in range(4)]
    ub, pa0, pa1, pa2, r2a, r3a, yw, yr, st = [P.alloc() for _ in range(9)]
    convP = P.copy()
    acc = {(t, j): P.alloc(4) for t in (1, 2) for j in (0, 1)}
    FT1, FT2, FB, FM = [[P.alloc(4) for _ in range(4)] for _ in range(4)]
    aM, aB, aT1, aT2, aP, aR2, aR3, uoff = [P.alloc() for _ in range(8)]
    P1, P2, P3, P4, P5, P6, LD = [P.alloc() for _ in range(7)]
    DV = P.alloc(2)
    KS = P.alloc(2)
    X = P.alloc(2)
    Y = P.alloc(2)
    Wp = P.alloc(2)
    tmp = P.alloc(16, 2)
    vL, vI, vG, poff, coff, junk = [P.alloc() for _ in range(6)]

    stamp()
    a(f'''
    s_and_b32 s3, s2, 4
    s_mul_i32 s3, s3, 14
    s_load_dwordx16 s[4:19], s[0:1], s3
    s_load_dwordx4 s[20:23], s[0:1], 120
    s_cmpk_ge_u32 s2, 0x100
    s_cbranch_scc1 L_end
    ''')
    if cfg.codepf:
        a(f'''
        s_getpc_b64 s[24:25]
        v_mov_b32 v1, 0
        v_lshl_add_u64 {vr(tmp, 2)}, v[0:1], 4, s[24:25]
        global_load_dword {vr(junk)}, {vr(tmp, 2)}, off offset:64
        ''')
    a(f'''
    s_and_b32 s26, s2, 3
    s_lshl_b32 s26, s26, 8
    s_andn2_b32 s27, s2, 15
    s_or_b32 s{sUCOL}, s26, s27
    s_lshl_b32 s27, s{sUCOL}, 7
    v_lshl_add_u32 {vr(poff)}, v0, 2, s27
    v_lshrrev_b32 {vr(coff)}, 8, {vr(poff)}
    v_lshlrev_b32 {vr(coff)}, 1, {vr(coff)}
    v_mov_b32 {vr(LD)}, 0
    v_mov_b32 {vr(DV)}, 0
    s_cmp_lg_u32 s3, 0
    s_waitcnt lgkmcnt(0)
    s_cbranch_scc0 L_noB
    global_load_dword {vr(P5)}, {vr(poff)}, s[14:15]
    global_load_dword {vr(P6)}, {vr(poff)}, s[16:17]
L_noB:
    global_load_dword {vr(P3)}, {vr(poff)}, s[10:11]
    global_load_dword {vr(P4)}, {vr(poff)}, s[12:13]
    global_load_dword {vr(P1)}, {vr(poff)}, s[6:7]
    s_cselect_b64 s[28:29], s[18:19], s[14:15]
    s_cselect_b64 s[30:31], s[20:21], s[16:17]
    global_load_short_d16_hi {vr(LD)}, {vr(coff)}, s[28:29]
    global_load_dword {vr(P2)}, {vr(poff)}, s[8:9]
    s_mov_b64 exec, 1
    global_load_short_d16_hi {vr(DV)}, {vr(coff)}, s[30:31]
    s_mov_b64 exec, -1
    s_cselect_b32 s{sCX}, {hex(f2u(math.log2(math.e)))}, 0
    s_cselect_b32 s{sEXA}, 4, 3
    s_cbranch_scc1 L_cxB
    s_mov_b32 s{sCX}, {hex(f2u(-math.log2(math.e)))}
L_cxB:
    v_readfirstlane_b32 s{sW}, v0
    v_and_b32 {vr(vL)}, 63, v0
    s_mov_b32 s56, s4
    s_mov_b32 s57, s5
    s_mov_b32 s58, 0x200000
    s_mov_b32 s59, 0x20000
    s_lshr_b32 s{sW}, s{sW}, 6
    ''')
    nvm_after_params = 2
    if cfg.upf:
        nvm_after_params += 1
        a(f'''
        s_lshr_b32 s27, s2, 3
        s_lshl_b32 s27, s27, 10
        s_add_u32 s27, s27, s26
        s_lshl_b32 s{sT0}, s{sW}, 18
        s_add_u32 s27, s27, s{sT0}
        v_lshrrev_b32 {vr(tmp + 4)}, 1, {vr(vL)}
        v_lshlrev_b32 {vr(tmp + 4)}, 15, {vr(tmp + 4)}
        v_and_b32 {vr(tmp + 5)}, 1, {vr(vL)}
        v_lshl_add_u32 {vr(tmp + 4)}, {vr(tmp + 5)}, 7, {vr(tmp + 4)}
        s_mov_b64 exec, 0xffff
        buffer_load_dword {vr(junk)}, {vr(tmp + 4)}, s[56:59], s27 offen
        s_mov_b64 exec, -1
        ''')
    stamp()
    tab1 = sum(SLOT[e] << (4 * i) for i, e in enumerate(T1))
    tab2 = sum((SLOT[e] - 8) << (4 * i) for i, e in enumerate(T2))
    t4, t6 = tmp + 4, tmp + 6
    a(f'''
    v_and_b32 {vr(vI)}, 15, v0
    v_lshrrev_b32 {vr(vG)}, 4, {vr(vL)}
    s_mul_i32 s{sSTG}, s{sW}, {STG}
    s_mul_i32 s{sTB}, s{sW}, {TBS}
    s_mul_i32 s{sU}, s{sW}, {UCH}
    s_add_u32 s{sTB}, s{sTB}, {TB0}
    s_add_u32 s{sU}, s{sU}, {UB0}
    s_movk_i32 s{sT0}, {ROW}
    v_lshl_add_u32 {vr(aM)}, {vr(vG)}, 4, s{sSTG}
    v_mad_u32_u24 {vr(aB)}, {vr(vI)}, s{sT0}, {vr(aM)}
    v_lshlrev_b32 {vr(t4)}, 2, {vr(vI)}
    s_mov_b32 s24, {hex(tab1 & 0xffffffff)}
    s_mov_b32 s25, {hex(tab1 >> 32)}
    s_mov_b32 s26, {hex(tab2 & 0xffffffff)}
    s_mov_b32 s27, {hex(tab2 >> 32)}
    v_lshrrev_b64 {vr(t6, 2)}, {vr(t4)}, s[24:25]
    v_and_b32 {vr(t6)}, 15, {vr(t6)}
    v_mad_u32_u24 {vr(aT1)}, {vr(t6)}, s{sT0}, {vr(aM)}
    v_lshrrev_b64 {vr(t6, 2)}, {vr(t4)}, s[26:27]
    v_and_b32 {vr(t6)}, 15, {vr(t6)}
    v_mad_u32_u24 {vr(aT2)}, {vr(t6)}, s{sT0}, {vr(aM)}
    v_lshlrev_b32 {vr(uoff)}, 11, v0
    buffer_load_dwordx4 {vr(UA, 4)}, {vr(uoff)}, s[56:59], s{sUCOL} offen
    buffer_load_dwordx4 {vr(UA + 4, 4)}, {vr(uoff)}, s[56:59], s{sUCOL} offen offset:1024
    v_mov_b32 {vr(DV + 1)}, 0
    v_mov_b32 {vr(t6)}, 0x3c00
    s_mov_b32 m0, s{sU}
    ''')
    z = DV + 1
    for k in acc.values():
        for r in range(4):
            a(f'v_mov_b32 {vr(k + r)}, 0')
    a(f'''
    ds_write_addtid_b32 {vr(z)} offset:0
    ds_write_addtid_b32 {vr(z)} offset:256
    s_mov_b32 m0, s{sTB}
    v_min_u32 {vr(t4 + 1)}, 31, {vr(vL)}
    ds_write_addtid_b32 {vr(z)} offset:2112
    ds_write_addtid_b32 {vr(z)} offset:2144
    ''')
    for k, (sh, w) in enumerate(((4, 1), (8, 2), (8, 3), (8, 4))):
        m = ((1 << (2 * w + 1)) - 1) << (15 + sh - w + 1)
        t = tmp + 8 + k
        a(f'''
        s_mov_b32 s{sT1}, {hex(m)}
        v_bfe_u32 {vr(t)}, s{sT1}, {vr(t4 + 1)}, 2
        v_mul_u32_u24 {vr(t)}, 0x20001, {vr(t)}
        v_and_b32 {vr(t)}, 0x20002, {vr(t)}
        v_mul_u32_u24 {vr(t)}, 0x1fc0, {vr(t)}
        ''')
    a(f'''
    v_lshlrev_b32 {vr(t4 + 1)}, 5, {vr(vG)}
    v_sub_u32 {vr(pa0)}, {vr(t4)}, {vr(t4 + 1)}
    s_add_u32 s{sT1}, s{sTB}, 100
    v_add_u32 {vr(pa0)}, s{sT1}, {vr(pa0)}
    ''')
    for k in range(4):
        a(f'ds_write_addtid_b32 {vr(tmp + 8 + k)} offset:{256 * k}')
    a(f's_mov_b32 m0, s{sSTG}')
    for k in range(4):
        a(f'ds_read2_b32 {vr(BOX[k], 2)}, {vr(pa0)} offset0:{64 * k + 6} offset1:{64 * k + 4}')
        a(f'ds_read2_b32 {vr(BOX[k] + 2, 2)}, {vr(pa0)} offset0:{64 * k + 2} offset1:{64 * k}')
    a(f'''
    ds_write_addtid_b32 {vr(z)} offset:{SLOT['z'] * ROW}
    ds_write_addtid_b32 {vr(t6)} offset:{24 * ROW}
    v_add_u32 {vr(pa1)}, 0x400, {vr(pa0)}
    v_add_u32 {vr(pa2)}, 0x800, {vr(pa0)}
    v_lshlrev_b32 {vr(t4 + 1)}, 4, {vr(vG)}
    v_lshl_add_u32 {vr(ub)}, {vr(vI)}, 5, {vr(t4 + 1)}
    v_add_u32 {vr(ub)}, s{sU}, {vr(ub)}
    v_sub_u32 {vr(t6 + 1)}, {vr(t4)}, {vr(t4 + 1)}
    s_add_u32 s{sT0}, s{sTB}, {R3O - 12}
    s_add_u32 s{sT1}, s{sTB}, {R2O - 24}
    v_add_u32 {vr(r3a)}, s{sT0}, {vr(t6 + 1)}
    v_lshl_add_u32 {vr(r2a)}, {vr(t6 + 1)}, 1, s{sT1}
    v_lshl_add_u32 {vr(aR2)}, {vr(vG)}, 7, {vr(t4)}
    v_lshrrev_b32 {vr(aR3)}, 1, {vr(aR2)}
    s_add_u32 s{sT0}, s{sTB}, {R2O}
    v_add_u32 {vr(aR2)}, s{sT0}, {vr(aR2)}
    v_add_u32 {vr(aR3)}, s{sTB}, {vr(aR3)}
    v_and_b32 {vr(t4 + 1)}, 16, {vr(vL)}
    v_lshl_add_u32 {vr(aP)}, {vr(vI)}, 5, {vr(t4 + 1)}
    v_and_b32 {vr(t4 + 1)}, 32, {vr(vL)}
    v_lshl_add_u32 {vr(aP)}, {vr(t4 + 1)}, 5, {vr(aP)}
    v_add_u32 {vr(aP)}, s{sTB}, {vr(aP)}
    v_mul_u32_u24 {vr(yw)}, 144, {vr(vG)}
    v_lshl_add_u32 {vr(yw)}, {vr(vI)}, 3, {vr(yw)}
    v_add_u32 {vr(yw)}, s{sSTG}, {vr(yw)}
    v_lshrrev_b32 {vr(t4 + 1)}, 2, {vr(vI)}
    v_mul_u32_u24 {vr(yr)}, {STG}, {vr(t4 + 1)}
    v_and_b32 {vr(t4 + 1)}, 3, {vr(vL)}
    v_mul_u32_u24 {vr(t4 + 1)}, 144, {vr(t4 + 1)}
    v_and_b32 {vr(st)}, 0xff, v0
    v_lshrrev_b32 {vr(t6 + 1)}, 4, {vr(st)}
    v_lshlrev_b32 {vr(t6 + 1)}, 3, {vr(t6 + 1)}
    v_add3_u32 {vr(yr)}, {vr(yr)}, {vr(t4 + 1)}, {vr(t6 + 1)}
    v_lshlrev_b32 {vr(st)}, 11, {vr(st)}
    s_mov_b32 s60, s22
    s_mov_b32 s61, s23
    s_mov_b32 s62, 0x400000
    s_mov_b32 s63, 0x20000
    s_and_b32 s{sT0}, s2, 4
    s_lshl_b32 s{sT0}, s{sT0}, 8
    s_add_u32 s{sOCOL}, s{sUCOL}, s{sT0}
    s_add_u32 s{sU2}, s{sUCOL}, 0x100000
    s_mov_b32 s{sSEL0}, 0x05040100
    s_mov_b32 s{sSEL1}, 0x07060302
    s_mov_b32 s{sHI}, 0xffff0000
    s_lshl_b32 s{sM1}, s{sW}, 8
    s_add_u32 s{sM1}, s{sM1}, {UB0 + 512}
    s_add_u32 s{sM2}, s{sM1}, 2048
    s_mov_b32 s{sIT}, 0
    ''')
    chi = 47274 / 32768
    clo = (math.log2(math.e) - chi) * math.log(2)
    a(f'''
    s_mov_b32 s{sCHI}, {hex(f2u(chi))}
    s_mov_b32 s{sCLO}, {hex(f2u(clo))}
    s_cmp_lg_u32 s3, 0
    s_waitcnt lgkmcnt(0)
    ''')
    stamp()
    a(f's_waitcnt vmcnt({nvm_after_params})')
    stamp()
    a.hot = True
    wr, wi = tmp, tmp + 2
    q0, q1, q2, q3 = tmp + 4, tmp + 6, tmp + 8, tmp + 10
    mx, dt = tmp + 12, tmp + 13

    def unpack(dst, src):
        a(f'v_lshlrev_b32 {vr(dst)}, 16, {vr(src)}\nv_and_b32 {vr(dst + 1)}, s{sHI}, {vr(src)}')
    a('s_cbranch_scc1 L_prepB')
    a.cond_begin()
    unpack(q0, P1)
    a(f'v_pk_mul_f32 {vr(q1, 2)}, {vr(q0, 2)}, s[{sCHI}:{sCHI + 1}] op_sel_hi:[1,0]')
    a(f'v_pk_mul_f32 {vr(q0, 2)}, {vr(q0, 2)}, s[{sCLO}:{sCLO + 1}] op_sel_hi:[1,0]')
    a(f'v_exp_f32 {vr(q1)}, {vr(q1)}\nv_exp_f32 {vr(q1 + 1)}, {vr(q1 + 1)}')
    unpack(wr, P3)
    unpack(wi, P4)
    a(f'v_pk_fma_f32 {vr(q1, 2)}, {vr(q1, 2)}, {vr(q0, 2)}, {vr(q1, 2)}')
    a(f'v_cvt_pk_bf16_f32 {vr(P1)}, {vr(q1)}, {vr(q1 + 1)}')
    a('s_branch L_prepC')
    a.cond_end()
    a('L_prepB:')
    a.cond_begin()
    unpack(q0, P3)
    unpack(q1, P4)
    unpack(q2, P5)
    unpack(q3, P6)
    a(f'''
    v_pk_mul_f32 {vr(wr, 2)}, {vr(q1, 2)}, {vr(q3, 2)} neg_lo:[1,0] neg_hi:[1,0]
    v_pk_mul_f32 {vr(wi, 2)}, {vr(q1, 2)}, {vr(q2, 2)}
    v_pk_fma_f32 {vr(wr, 2)}, {vr(q0, 2)}, {vr(q2, 2)}, {vr(wr, 2)}
    v_pk_fma_f32 {vr(wi, 2)}, {vr(q0, 2)}, {vr(q3, 2)}, {vr(wi, 2)}
    ''')
    a.cond_end()
    a('.p2align 3')
    a('L_prepC:')
    dpp = [f'v_max_u32_dpp {vr(mx)}, {vr(mx)}, {vr(mx)} {m} bank_mask:0xf' for m in (
        'row_shr:1 row_mask:0xf', 'row_shr:2 row_mask:0xf', 'row_shr:4 row_mask:0xf', 'row_shr:8 row_mask:0xf',
        'row_bcast:15 row_mask:0xa', 'row_bcast:31 row_mask:0xc')]
    a(f'''
    v_max3_f32 {vr(mx)}, |{vr(wr)}|, |{vr(wr + 1)}|, |{vr(wi)}|
    v_max_f32_e64 {vr(mx)}, {vr(mx)}, |{vr(wi + 1)}|
    v_mul_f32 {vr(dt)}, s{sCHI}, {vr(LD)}
    v_mul_f32 {vr(LD)}, s{sCLO}, {vr(LD)}
    {dpp[0]}
    v_exp_f32 {vr(dt)}, {vr(dt)}
    v_lshlrev_b32 {vr(q0)}, 16, {vr(P1)}
    {dpp[1]}
    v_fma_f32 {vr(dt)}, {vr(dt)}, {vr(LD)}, {vr(dt)}
    v_cvt_pk_bf16_f32 {vr(dt)}, {vr(dt)}, {vr(dt)}
    {dpp[2]}
    v_and_b32 {vr(dt)}, s{sHI}, {vr(dt)}
    v_and_b32 {vr(q0 + 1)}, s{sHI}, {vr(P1)}
    {dpp[3]}
    v_mul_f32 {vr(q2)}, s{sCX}, {vr(dt)}
    v_mul_f32 {vr(q3)}, 0.15915494, {vr(dt)}
    {dpp[4]}
    v_lshlrev_b32 {vr(q1)}, 16, {vr(P2)}
    v_and_b32 {vr(q1 + 1)}, s{sHI}, {vr(P2)}
    {dpp[5]}
    v_pk_mul_f32 {vr(X, 2)}, {vr(q0, 2)}, {vr(q2, 2)} op_sel_hi:[1,0]
    v_readlane_b32 s{sT0}, {vr(mx)}, 63
    v_pk_mul_f32 {vr(Y, 2)}, {vr(q1, 2)}, {vr(q3, 2)} op_sel_hi:[1,0]
    s_lshr_b32 s{sT0}, s{sT0}, 23
    s_max_u32 s{sT0}, s{sT0}, 5
    s_sub_u32 s{sSC}, 258, s{sT0}
    s_lshl_b32 s{sSC}, s{sSC}, 23
    s_sub_u32 s{sINV}, s{sT0}, s{sEXA}
    s_lshl_b32 s{sINV}, s{sINV}, 23
    v_fma_mixlo_f16 {vr(Wp)}, {vr(wr)}, s{sSC}, 0
    v_fma_mixlo_f16 {vr(Wp + 1)}, {vr(wr + 1)}, s{sSC}, 0
    v_fma_mixhi_f16 {vr(Wp)}, -{vr(wi)}, s{sSC}, 0
    v_fma_mixhi_f16 {vr(Wp + 1)}, -{vr(wi + 1)}, s{sSC}, 0
    v_mul_f32 {vr(KS)}, s{sINV}, {vr(dt)}
    ''')
    stamp()
    a('.p2align 3')
    a('L_kg:')
    R, RT = tmp, tmp + 2
    tq = [tmp + 4, tmp + 5, tmp + 6, tmp + 7]
    seed = {p: P.alloc() for p in (1, 4, 8, 16, 32, 64, 128, 256, 512)}
    G = {0: Wp}
    E = {1: seed[8], 2: seed[16], 4: seed[32], 8: seed[64]}
    pend = []
    vt = [0]
    tqi = [0]

    def flush(force=False):
        if force or (vt[0] >= cfg.grp_time and len(pend) >= 2):
            n = len(pend) if force else min(len(pend), max(2, (vt[0] - 8) // 4 + (1 if len(pend) > 4 else 0)))
            for _ in range(n):
                a(pend.pop(0))
            vt[0] = 0

    def valu(t, c=4):
        a(t)
        vt[0] += c

    def wrow(reg, row):
        pend.append(f'ds_write_addtid_b32 {vr(reg)} offset:{row * ROW}')

    def cmul(d, x, y, conj):
        t = tq[tqi[0] % 4]
        tqi[0] += 1
        if conj:
            return [f'v_pk_mul_f16 {vr(t)}, {vr(x)}, {vr(y)} op_sel:[1,1] op_sel_hi:[1,0]',
                    f'v_pk_fma_f16 {vr(d)}, {vr(x)}, {vr(y)}, {vr(t)} op_sel:[0,0,0] op_sel_hi:[0,1,1] neg_hi:[1,0,0]']
        return [f'v_pk_mul_f16 {vr(t)}, {vr(x)}, {vr(y)} op_sel:[1,1] op_sel_hi:[1,0] neg_lo:[1,0]',
                f'v_pk_fma_f16 {vr(d)}, {vr(x)}, {vr(y)}, {vr(t)} op_sel:[0,0,0] op_sel_hi:[0,1,1]']

    def g(e, s, p):
        G[e] = P.alloc()
        for t in cmul(G[e], G[s], seed[p], True):
            valu(t)
        wrow(G[e], SLOT[e])
        flush()

    def eprod(i):
        hb = 1 << (i.bit_length() - 1)
        E[i] = P.alloc()
        for t in cmul(E[i], E[i - hb], E[hb], False):
            valu(t)
        wrow(E[i], 24 + i)
        flush()

    def sq(p):
        valu(f'v_pk_mul_f32 {vr(RT, 2)}, {vr(R, 2)}, {vr(R, 2)} op_sel:[1,1] op_sel_hi:[1,0] neg_lo:[1,0]')
        valu(f'v_pk_fma_f32 {vr(R, 2)}, {vr(R, 2)}, {vr(R, 2)}, {vr(RT, 2)} op_sel:[0,0,0] op_sel_hi:[0,1,1]')
        if p in seed:
            valu(f'v_cvt_pk_f16_f32 {vr(seed[p])}, {vr(R)}, {vr(R + 1)}')
            if p in (8, 16, 32, 64):
                wrow(seed[p], 24 + p // 8)
            if p == 128:
                wrow(seed[p], SLOT['M'])
        flush()

    def rd(F, addr, row0):
        for ks in range(4):
            pend.append(f'ds_read_b128 {vr(F[ks], 4)}, {vr(addr)} offset:{row0 * ROW + 64 * ks}')

    wrow(G[0], SLOT[0])
    valu(f'v_cos_f32 {vr(R)}, {vr(Y)}', 8)
    valu(f'v_sin_f32 {vr(R + 1)}, {vr(Y)}', 8)
    valu(f'v_exp_f32_e64 {vr(RT)}, {vr(X)}', 8)
    flush(True)
    valu(f'v_pk_mul_f32 {vr(R, 2)}, {vr(R, 2)}, {vr(RT, 2)} op_sel_hi:[1,0]')
    valu(f'v_cvt_pk_f16_f32 {vr(seed[1])}, {vr(R)}, {vr(R + 1)}')
    g(1, 0, 1); sq(2); g(2, 1, 1); sq(4); g(3, 2, 1); sq(8); g(4, 0, 4); g(5, 1, 4); sq(16)
    g(6, 2, 4); g(7, 3, 4); sq(32); eprod(3); g(8, 0, 8); sq(64); eprod(5); eprod(6); eprod(7); sq(128)
    rd(FM, aM, SLOT['M'])
    eprod(9); eprod(10); sq(256); eprod(11); eprod(12); eprod(13); sq(512); eprod(14); eprod(15)
    rd(FB, aB, 24)
    g(256, 0, 256); g(258, 2, 256); g(260, 4, 256); g(262, 6, 256); g(264, 8, 256)
    rd(FT1, aT1, 0)
    g(516, 4, 512); g(520, 8, 512); g(772, 260, 512); g(776, 264, 512)
    g(1032, 520, 512); g(1288, 776, 512); g(1544, 1032, 512); g(1800, 1288, 512)
    rd(FT2, aT2, 8)
    flush(True)
    prods = []
    for ks in range(4):
        for r in range(4):
            prods += cmul(FM[ks] + r, FB[ks] + r, FM[ks] + r, False)
    order = [(1, 0, 0, 2), (1, 0, 1, 2), (1, 0, 2, 2), (1, 0, 3, 2), (2, 0, 0, 2), (1, 1, 0, 2), (2, 1, 0, 2), (2, 0, 1, 2),
             (2, 0, 2, 2), (1, 1, 1, 2), (2, 1, 1, 2), (2, 0, 3, 4), (1, 1, 2, 3), (2, 1, 2, 3), (1, 1, 3, 0), (2, 1, 3, 0)]
    a.hot = False
    ids = {tuple(sorted(d))[0][1]: oid for oid, d in a.dsq if d}
    for n, (t, j, ks, npr) in enumerate(order):
        if n == 0:
            a.wait_ds(ids[FT1[3]])
        if n == 4:
            a.wait_ds(ids[FT2[1]])
        if n == 8:
            a.wait_ds(ids[FT2[3]])
        if n == 14:
            a(f'v_mov_b32 {vr(Y)}, {vr(Y + 1)}\nv_mov_b32 {vr(X)}, {vr(X + 1)}')
        FA = (FT1 if t == 1 else FT2)[ks]
        FBx = (FB if j == 0 else FM)[ks]
        a(f'v_mfma_f32_16x16x32_f16 {vr(acc[t, j], 4)}, {vr(FA, 4)}, {vr(FBx, 4)}, {vr(acc[t, j], 4)}')
        for _ in range(npr):
            a(prods.pop(0))
        if n == 14:
            a(f'v_mov_b32 {vr(Wp)}, {vr(Wp + 1)}\ns_cmp_lg_u32 s{sIT}, 0')
    assert not prods
    a(f'''
    s_cbranch_scc1 L_kg_done
    s_mov_b32 s{sIT}, 1
    s_bitcmp1_b32 s2, 3
    s_cbranch_scc1 L_ld2
    s_cmp_ge_u32 s{sW}, 2
    s_cbranch_scc1 L_kg
L_ld2:
    buffer_load_dwordx4 {vr(UBr, 4)}, {vr(uoff)}, s[56:59], s{sU2} offen
    buffer_load_dwordx4 {vr(UBr + 4, 4)}, {vr(uoff)}, s[56:59], s{sU2} offen offset:1024
    ''')
    a.cond_begin()
    a('s_branch L_kg')
    a.cond_end()
    a('.p2align 3')
    a('L_kg_done:')
    a.hot = True
    stamp()

    def stage_ops(U, t0):
        v, d = [], []
        for ch in range(8):
            k = ch // 2
            v.append(f'v_perm_b32 {vr(t0 + ch)}, {vr(U + 4 + k)}, {vr(U + k)}, s{sSEL1 if ch & 1 else sSEL0}')
            d.append(f'ds_write_addtid_b32 {vr(t0 + ch)} offset:{ch * UCH}')
        return v, d
    a(f'''
    s_bitcmp1_b32 s2, 3
    s_waitcnt vmcnt(2)
    s_cbranch_scc1 L_st1
    s_cmp_ge_u32 s{sW}, 2
    s_waitcnt vmcnt(0)
    s_cbranch_scc1 L_st1
    ''')
    a.cond_begin()
    v, d = stage_ops(UBr, tmp + 8)
    a(f's_mov_b32 m0, s{sM2}')
    a('\n'.join(v + d))
    a.cond_end()
    a('.p2align 3')
    a('L_st1:')
    v, d = stage_ops(UA, tmp)
    a(f's_mov_b32 m0, s{sM1}')
    a('\n'.join(v[:4] + d[:2] + v[4:] + d[2:5]))
    PK = [FT1[0], FT1[1]]
    K2, K3 = FT1[2], FT1[2] + 2
    first = True
    stg_last = None
    for key in ((1, 0), (2, 0), (1, 1), (2, 1)):
        for h in range(2):
            r = acc[key] + 2 * h
            if first:
                a(f'v_pk_fma_f32 {vr(r, 2)}, {vr(r, 2)}, {vr(KS, 2)}, {vr(DV, 2)} op_sel_hi:[1,0,1]')
                first = False
            else:
                a(f'v_pk_mul_f32 {vr(r, 2)}, {vr(r, 2)}, {vr(KS, 2)} op_sel_hi:[1,0]')
        if key == (2, 0):
            stg_last = a('\n'.join(d[5:]))
    for j in range(2):
        v5 = [acc[1, j] + r for r in range(4)] + [acc[2, j]]
        for r in range(4):
            a(f'v_cvt_pk_bf16_f32 {vr(PK[j] + r)}, {vr(v5[r + 1])}, {vr(v5[r])}')
        if j == 0:
            a(f'ds_write_b128 {vr(aP)}, {vr(PK[0], 4)} offset:64')
    a(f'''
    v_cvt_pk_bf16_f32 {vr(K2)}, {vr(acc[2, 0] + 1)}, {vr(acc[2, 0] + 2)}
    v_cvt_pk_bf16_f32 {vr(K2 + 1)}, {vr(acc[2, 1] + 1)}, {vr(acc[2, 1] + 2)}
    v_cvt_pk_bf16_f32 {vr(K3)}, {vr(acc[2, 0] + 3)}, {vr(acc[2, 1] + 3)}
    ds_write_b128 {vr(aP)}, {vr(PK[1], 4)} offset:{64 + 512}
    ds_write2_b32 {vr(aR2)}, {vr(K2)}, {vr(K2 + 1)} offset0:0 offset1:16
    ds_write_b16 {vr(aR3)}, {vr(K3)} offset:{R3O}
    ds_write_b16_d16_hi {vr(aR3)}, {vr(K3)} offset:{R3O + 32}
    s_mov_b64 exec, 1
    ds_write_b16_d16_hi {vr(aP)}, {vr(PK[0])} offset:60
    s_bfm_b64 exec, 1, 63
    ds_write2_b32 {vr(aP)}, {vr(PK[1] + 3)}, {vr(PK[1] + 3)} offset0:148 offset1:149
    ds_write_b16 {vr(aP)}, {vr(PK[1] + 3)} offset:602
    s_bfm_b64 exec, 1, 31
    ds_write_b16_d16_hi {vr(aP)}, {vr(K2 + 1)} offset:1760
    ds_write_b16_d16_hi {vr(aP)}, {vr(K2 + 1)} offset:1764
    ds_write_b16_d16_hi {vr(aP)}, {vr(K2 + 1)} offset:1766
    ds_write_b16_d16_hi {vr(aP)}, {vr(K2 + 1)} offset:1770
    s_mov_b64 exec, -1
    ''')
    a.wait_ds(stg_last)
    a('s_bitcmp1_b32 s2, 3')
    a.hot = False
    stamp()
    a('s_barrier')
    stamp()
    a('s_cbranch_scc1 L_hi')
    dsq0 = list(a.dsq)
    ts0 = nts[0]
    hiwater = [P.hi]

    def conv(role):
        a.dsq = list(dsq0)
        nts[0] = ts0
        Q = convP.copy()
        Q.release(UA, 8)
        if role == 'lo':
            Q.release(UBr, 8)
        tiles = [0, 1, 2, 3, 4] if role == 'lo' else [5, 6, 7]
        slots = []

        def W16(tau): return ('U', 512 * tau - 32)
        def W24(tau): return ('U', 512 * tau - 48)

        def box2(tau):
            for ph, (w, b) in enumerate(((W16, 0), (W16, 1), (W24, 0), (W24, 1))):
                slots.append(('mf', ('D', tau, ph), w(tau), ('BOX', b)))

        def box3(tau):
            slots.append(('mf', ('D', tau, 4), W16(tau), ('BOX', 2)))
            slots.append(('mf', ('D', tau, 5), W24(tau), ('BOX', 3)))

        def far2(tau):
            for h in range(2):
                for mu in (2, 3, 4):
                    if tau + mu in tiles:
                        slots.append(('mf', ('Y', tau + mu), ('V', tau, h), ('R2', mu, h)))

        def far3(tau):
            for mu in (4, 5, 6, 7):
                if tau + mu in tiles:
                    slots.append(('mf', ('Y', tau + mu), ('V', tau, 2), ('R3', mu)))

        def spec(t):
            slots.append(('mf', ('Y', t), ('A', 17), W16(t - 4)))

        def near(t, ms=None):
            for m in (ms if ms is not None else range(min(16, 8 * t + 7), -1, -1)):
                slots.append(('mf', ('Y', t), ('A', m), ('U', 64 * (8 * t - m) - 32)))
        if role == 'lo':
            box2(0); box3(0); box2(1); box2(2)
            far2(0); far3(0); far2(1); far2(2); spec(4)
            for t in tiles:
                near(t)
                slots.append(('fin', t))
        else:
            box2(1); box3(1); box3(0); box2(2); box3(2)
            far2(1); far3(1); far3(0); spec(5)
            box2(3); box3(3)
            far2(2); far3(2); spec(6)
            slots.append(('stage2',))
            far2(3); far3(3); spec(7); near(5, [16])
            slots.append(('bar2',))
            near(5, range(15, 7, -1)); box2(4); near(5, range(7, -1, -1))
            slots.append(('fin', 5))
            far2(4); box2(5); near(6)
            slots.append(('fin', 6))
            far2(5); near(7)
            slots.append(('fin', 7))
        uses = {}
        for s, sl in enumerate(slots):
            if sl[0] == 'mf':
                new = list(sl)
                for pos in (2, 3):
                    k = sl[pos]
                    if k[0] == 'U':
                        gen_, last = uses.get(k, (0, s))
                        if s - last > 30:
                            gen_ += 1
                        uses[k] = (gen_, s)
                        new[pos] = k + (gen_,)
                slots[s] = tuple(new)
        first, last = {}, {}
        for s, sl in enumerate(slots):
            if sl[0] == 'mf':
                for k in sl[1:]:
                    first.setdefault(k, s)
                    last[k] = s
        bar2 = [s for s, sl in enumerate(slots) if sl[0] == 'bar2']
        bar2 = bar2[0] if bar2 else -1
        reg = {('BOX', k): BOX[k] for k in range(4)}
        loads = []
        for k in sorted(first, key=lambda k: first[k]):
            if k[0] in ('A', 'U', 'R2', 'R3'):
                loads.append([k, 0])

        def load_ins(k):
            r = reg[k]
            if k[0] == 'U':
                return [(f'ds_read_b128 {vr(r, 4)}, {vr(ub)} offset:{512 + k[1]}', 4)]
            if k[0] == 'A':
                off = 546 if k[1] == 17 else 32 * k[1]
                base = (pa0, pa1, pa2)[off // 256]
                o = off % 256
                return [(f'ds_read2_b32 {vr(r, 2)}, {vr(base)} offset0:{o + 6} offset1:{o + 4}', 4),
                        (f'ds_read2_b32 {vr(r + 2, 2)}, {vr(base)} offset0:{o + 2} offset1:{o}', 4)]
            if k[0] == 'R2':
                o = 8 * (16 * (k[1] - 2) + 3 - 2 * k[2])
                return [(f'ds_read_b64 {vr(r, 2)}, {vr(r2a)} offset:{o}', 2),
                        (f'ds_read_b64 {vr(r + 2, 2)}, {vr(r2a)} offset:{o - 8}', 2)]
            o = 16 * (k[1] - 4)
            return [(f'ds_read2_b32 {vr(r, 2)}, {vr(r3a)} offset0:{o + 3} offset1:{o + 2}', 4),
                    (f'ds_read2_b32 {vr(r + 2, 2)}, {vr(r3a)} offset0:{o + 1} offset1:{o}', 4)]

        def needs_stage2(k):
            return role == 'hi' and k[0] == 'U' and k[1] // 2 + 271 >= 1024

        def issue(item, must=False):
            k = item[0]
            if k not in reg:
                if not must and len(Q.free) < 28:
                    return None
                r = Q.alloc(4)
                assert r is not None, 'out of registers'
                reg[k] = r
            ins = load_ins(k)
            a(ins[item[1]][0])
            c = ins[item[1]][1]
            item[1] += 1
            if item[1] == len(ins):
                loads.remove(item)
            return c

        def do_loads(s, budget, nmax):
            spent, n = 0, 0
            for item in list(loads):
                k = item[0]
                if first[k] - s > cfg.look:
                    break
                if needs_stage2(k) and s < bar2:
                    continue
                while item in loads and spent < budget and n < nmax:
                    c = issue(item)
                    if c is None:
                        return
                    spent += c
                    n += 1
            if n == 0:
                for item in loads:
                    if item[0][0] != 'U':
                        issue(item)
                        break

        vq = []
        dq = []
        evq = []
        ytmp = Q.alloc(2)
        sdat = Q.alloc(4)

        def pop_v():
            _, text, key, frees, cb = vq.pop(0)
            a(text)
            for r, n in frees:
                Q.release(r, n)
            if cb:
                cb()

        def make_v(tau, which, s):
            if which == 2:
                r = reg[('V', tau, 2)] = Q.alloc(4)
                d0, d1 = reg[('D', tau, 4)], reg[('D', tau, 5)]
                for i in range(4):
                    vq.append([len(a.ins) + 8, f'v_cvt_pk_bf16_f32 {vr(r + i)}, {vr(d0 + i)}, {vr(d1 + i)}', ('V', tau, 2), [(d0, 4), (d1, 4)] if i == 3 else [], None])
            else:
                d = [reg[('D', tau, p)] for p in range(4)]
                for h in range(2):
                    r = reg[('V', tau, h)] = Q.alloc(4)
                    for i in range(4):
                        kk = 2 * h + i // 2
                        p = 2 * (i % 2)
                        vq.append([len(a.ins) + 8, f'v_cvt_pk_bf16_f32 {vr(r + i)}, {vr(d[p] + kk)}, {vr(d[p + 1] + kk)}', ('V', tau, h),
                                   [(x, 4) for x in d] if (h, i) == (1, 3) else [], None])

        def store_block(t):
            k = tiles.index(t)
            lab = f'L_ns_{role}{t}'
            a(f's_bitcmp1_b32 s{sW}, 2')
            a('s_barrier')
            a(f's_cbranch_scc{1 if k % 2 == 0 else 0} {lab}')
            a.cond_begin()
            a(f'''
            ds_read_b64_tr_b16 {vr(sdat, 2)}, {vr(yr)} offset:{YT * k}
            ds_read_b64_tr_b16 {vr(sdat + 2, 2)}, {vr(yr)} offset:{YT * k + 4 * STG}
            s_add_u32 s{sT0}, s{sOCOL}, {t * 256 * 2048}
            s_waitcnt lgkmcnt(0)
            buffer_store_dwordx4 {vr(sdat, 4)}, {vr(st)}, s[60:63], s{sT0} offen
            ''')
            a.cond_end()
            a(f'{lab}:')
            stamp()

        def service(s, final=False):
            nd = 0
            while dq and (final or (dq[0][0] <= s and nd < 2)):
                _, text, cb = dq.pop(0)
                oid = a(text)
                nd += 1
                if cb:
                    cb(oid)
            if not final:
                do_loads(s, 8, 2 - nd if nd else 2)
            nv = 0
            while vq and (final or (vq[0][0] <= len(a.ins) and nv < 2)):
                pop_v()
                nv += 1
            if final and dq:
                return service(s, True)
            while evq and (final or evq[0][0] <= s):
                _, oid, t = evq.pop(0)
                a.wait_ds(oid)
                store_block(t)

        started = set()
        cur = [0]
        stage_last = [None]
        do_loads(0, 64, 8)
        for s, sl in enumerate(slots):
            cur[0] = s
            if sl[0] == 'mf':
                _, dk, ak, bk = sl
                for k in (ak, bk):
                    for item in [it for it in loads if it[0] == k]:
                        while item in loads:
                            issue(item, True)
                    while any(v[2] == k for v in vq):
                        pop_v()
                if dk not in reg:
                    reg[dk] = Q.alloc(4)
                    assert reg[dk] is not None
                c = vr(reg[dk], 4) if dk in started else '0'
                started.add(dk)
                a(f'v_mfma_f32_16x16x32_bf16 {vr(reg[dk], 4)}, {vr(reg[ak], 4)}, {vr(reg[bk], 4)}, {c}')
                for k in (ak, bk):
                    if last[k] == s:
                        Q.release(reg[k], 4)
                if dk[0] == 'D' and dk[2] == 3:
                    make_v(dk[1], 0, s)
                if dk[0] == 'D' and dk[2] == 5:
                    make_v(dk[1], 2, s)
                service(s)
            elif sl[0] == 'fin':
                t = sl[1]
                y = reg[('Y', t)]
                k = tiles.index(t)

                def after(t=t, k=k, s=s):
                    dq.append([0, f'ds_write_b64 {vr(yw)}, {vr(ytmp, 2)} offset:{YT * k}',
                               lambda oid: evq.append([cur[0] + 4, oid, t])])
                vq.append([len(a.ins) + 8, f'v_cvt_pk_bf16_f32 {vr(ytmp)}, {vr(y)}, {vr(y + 1)}', None, [], None])
                vq.append([len(a.ins) + 8, f'v_cvt_pk_bf16_f32 {vr(ytmp + 1)}, {vr(y + 2)}, {vr(y + 3)}', None, [(y, 4)], after])
            elif sl[0] == 'stage2':
                t0 = Q.alloc(8)
                v, d = stage_ops(UBr, t0)
                stamp()
                a(f's_waitcnt vmcnt(0)\ns_mov_b32 m0, s{sM2}')
                stamp()
                newv = []
                for i in range(8):
                    def after(i=i):
                        def cb(oid):
                            stage_last[0] = oid
                            Q.release(t0 + i, 1)
                        dq.append([0, d[i], cb])
                    newv.append([0, v[i], 'stg', [(UBr, 8)] if i == 7 else [], after])
                vq[0:0] = newv
            elif sl[0] == 'bar2':
                while any(v[2] == 'stg' for v in vq):
                    pop_v()
                while dq:
                    _, text, cb = dq.pop(0)
                    cb(a(text))
                a.wait_ds(stage_last[0])
                a('s_barrier')
                stamp()
                do_loads(s, 64, 6)
        service(len(slots), True)
        hiwater.append(Q.hi)
        finish()

    def finish():
        if cfg.ts or cfg.dump:
            a('s_waitcnt vmcnt(0)')
            stamp()
            a(f'''
            s_load_dwordx2 s[24:25], s[0:1], 144
            s_waitcnt lgkmcnt(0)
            s_mov_b32 s26, 0x10000000
            s_mov_b32 s27, 0x20000
            ''')
        if cfg.ts:
            a(f's_lshl_b32 s{sT0}, s2, 3\ns_add_u32 s{sT0}, s{sT0}, s{sW}\ns_lshl_b32 s{sT0}, s{sT0}, 7\nv_mov_b32 v2, s{sT0}')
            for k in range(nts[0]):
                a(f's_sub_u32 s{sT1}, s{64 + 2 * k}, s64\nv_mov_b32 v3, s{sT1}\nbuffer_store_dword v3, v2, s[24:27], 0 offen offset:{4 * k}')
        if cfg.dump:
            lab = f'L_dump{len(hiwater)}'
            a(f'''
            s_barrier
            v_mbcnt_lo_u32_b32 v2, -1, 0
            v_mbcnt_hi_u32_b32 v2, -1, v2
            s_lshl_b32 s{sT0}, s{sW}, 6
            v_add_u32 v2, s{sT0}, v2
            v_lshlrev_b32 v2, 2, v2
            s_mul_i32 s{sT0}, s2, 163840
            s_add_u32 s{sT0}, s{sT0}, 0x100000
            s_mov_b32 s{sT1}, 0
{lab}:
            ds_read_b32 v3, v2
            s_waitcnt lgkmcnt(0)
            buffer_store_dword v3, v2, s[24:27], s{sT0} offen
            v_add_u32 v2, 2048, v2
            s_add_u32 s{sT1}, s{sT1}, 1
            s_cmp_lt_u32 s{sT1}, {(LDS + 2047) // 2048}
            s_cbranch_scc1 {lab}
            ''')
        a('s_endpgm')

    conv('lo')
    a('.p2align 3')
    a('L_hi:')
    conv('hi')
    a('L_end:\ns_endpgm')
    a.hazards()
    a.align8()
    size = a.measure()
    nv = max(hiwater)
    head = f'; @launch grid=(256,1,1) block=(512,1,1) lds={LDS}\n'
    head += f'''.amdgcn_target "amdgcn-amd-amdhsa--gfx950"
.text
.globl {NAME}_kernel
.p2align 8
.type {NAME}_kernel,@function
{NAME}_kernel:
'''
    pad = ''
    if size < 8192 + 256:
        pad = ''.join('    s_endpgm\n' for _ in range((8192 + 256 - size) // 4))
    tail = f'''.section .rodata,"a"
.p2align 6
.amdhsa_kernel {NAME}_kernel
  .amdhsa_next_free_vgpr 256
  .amdhsa_next_free_sgpr 102
  .amdhsa_accum_offset 256
  .amdhsa_group_segment_fixed_size 0
  .amdhsa_kernarg_size 152
  .amdhsa_user_sgpr_count 2
  .amdhsa_user_sgpr_kernarg_segment_ptr 1
  .amdhsa_system_sgpr_workgroup_id_x 1
.end_amdhsa_kernel
'''
    print(f'code size {size} B, vgpr highwater {hiwater}, stamps {nts[0]}, LDS {LDS}', file=sys.stderr)
    return head + a.text() + pad + tail


if __name__ == '__main__':
    cfg = Cfg()
    out = sys.argv[1]
    for kv in sys.argv[2:]:
        k, v = kv.split('=')
        setattr(cfg, k, type(getattr(cfg, k))(int(v)))
    open(out, 'w').write(gen(cfg))
```

```python
import sys, struct, math, itertools
sys.path.insert(0, 'work')
from asmlib import *

NAME = "concat_heads__ssm_conv_s4d__ssm_conv_s4__prompt"


def f2u(x):
    return struct.unpack('<I', struct.pack('<f', x))[0]


ROW = 288
STG = 11584
UB0 = 8 * STG
UCH = 4608
TB0 = UB0 + 8 * UCH
TBS = 3168
R2O, R3O = 2400, 2912
LDS = TB0 + 8 * TBS
YT = 640

T1 = [0, 1, 2, 3, 4, 5, 6, 7, 256, 256, 258, 260, 260, 260, 262, 264]
T2 = [4, 516, 520, 1032, 8, 772, 776, 1288, 260, 'z', 'z', 1544, 264, 'z', 'z', 1800]


SLOT = {0: 5, 1: 3, 2: 14, 3: 15, 4: 11, 5: 6, 6: 7, 7: 4, 256: 1, 258: 13, 260: 8, 262: 2, 264: 12, 516: 9, 520: 16,
        1032: 21, 8: 20, 776: 17, 1288: 19, 'z': 22, 1544: 10, 1800: 18, 772: 23, 'M': 0}


class Cfg:
    ts = False
    dump = False
    grp_time = 16
    look = 6
    codepf = True
    upf = True
    amp = -1
    ampw = -1


def gen(cfg):
    a = Asm()
    P = Pool(1, 256)
    nts = [0]

    def stamp():
        if cfg.ts or cfg.amp >= 0:
            k = nts[0]
            a(f's_memtime s[{64 + 2 * k}:{65 + 2 * k}]')
            nts[0] += 1

    sW, sUCOL, sOCOL, sSTG, sTB, sU, sSEL0, sSEL1 = 32, 33, 34, 35, 36, 37, 38, 39
    sCHI, sCLO, sCX, sSC, sINV, sT0, sT1, sIT = 40, 42, 44, 45, 46, 48, 49, 50
    sHI, sEXA, sU2, sM1, sM2 = 51, 52, 53, 54, 55

    UA = P.alloc(8, 4)
    UBr = P.alloc(8, 4)
    BOX = [P.alloc(4) for _ in range(4)]
    ub, pa0, pa1, pa2, r2a, r3a, yw, yr, st = [P.alloc() for _ in range(9)]
    convP = P.copy()
    acc = {(t, j): P.alloc(4) for t in (1, 2) for j in (0, 1)}
    FT1, FT2, FB, FM = [[P.alloc(4) for _ in range(4)] for _ in range(4)]
    aM, aB, aT1, aT2, aP, aR2, aR3, uoff = [P.alloc() for _ in range(8)]
    P1, P2, P3, P4, P5, P6, LD = [P.alloc() for _ in range(7)]
    DV = P.alloc(2)
    KS = P.alloc(2)
    X = P.alloc(2)
    Y = P.alloc(2)
    Wp = P.alloc(2)
    tmp = P.alloc(16, 2)
    vL, vI, vG, poff, coff, junk = [P.alloc() for _ in range(6)]

    stamp()
    a(f'''
    s_and_b32 s3, s2, 4
    s_mul_i32 s3, s3, 14
    s_load_dwordx16 s[4:19], s[0:1], s3
    s_load_dwordx4 s[20:23], s[0:1], 120
    s_cmpk_ge_u32 s2, 0x100
    s_cbranch_scc1 L_end
    ''')
    if cfg.codepf:
        a(f'''
        s_getpc_b64 s[24:25]
        v_mov_b32 v1, 0
        v_lshl_add_u64 {vr(tmp, 2)}, v[0:1], 4, s[24:25]
        global_load_dword {vr(junk)}, {vr(tmp, 2)}, off offset:64
        ''')
    a(f'''
    s_and_b32 s26, s2, 3
    s_lshl_b32 s26, s26, 8
    s_andn2_b32 s27, s2, 15
    s_or_b32 s{sUCOL}, s26, s27
    s_lshl_b32 s27, s{sUCOL}, 7
    v_lshl_add_u32 {vr(poff)}, v0, 2, s27
    v_lshrrev_b32 {vr(coff)}, 8, {vr(poff)}
    v_lshlrev_b32 {vr(coff)}, 1, {vr(coff)}
    v_mov_b32 {vr(LD)}, 0
    v_mov_b32 {vr(DV)}, 0
    s_cmp_lg_u32 s3, 0
    s_waitcnt lgkmcnt(0)
    s_cbranch_scc0 L_noB
    global_load_dword {vr(P5)}, {vr(poff)}, s[14:15]
    global_load_dword {vr(P6)}, {vr(poff)}, s[16:17]
L_noB:
    global_load_dword {vr(P3)}, {vr(poff)}, s[10:11]
    global_load_dword {vr(P4)}, {vr(poff)}, s[12:13]
    global_load_dword {vr(P1)}, {vr(poff)}, s[6:7]
    s_cselect_b64 s[28:29], s[18:19], s[14:15]
    s_cselect_b64 s[30:31], s[20:21], s[16:17]
    global_load_short_d16_hi {vr(LD)}, {vr(coff)}, s[28:29]
    global_load_dword {vr(P2)}, {vr(poff)}, s[8:9]
    s_mov_b64 exec, 1
    global_load_short_d16_hi {vr(DV)}, {vr(coff)}, s[30:31]
    s_mov_b64 exec, -1
    s_cselect_b32 s{sCX}, {hex(f2u(math.log2(math.e)))}, 0
    s_cselect_b32 s{sEXA}, 4, 3
    s_cbranch_scc1 L_cxB
    s_mov_b32 s{sCX}, {hex(f2u(-math.log2(math.e)))}
L_cxB:
    v_readfirstlane_b32 s{sW}, v0
    v_and_b32 {vr(vL)}, 63, v0
    s_mov_b32 s56, s4
    s_mov_b32 s57, s5
    s_mov_b32 s58, 0x200000
    s_mov_b32 s59, 0x20000
    s_lshr_b32 s{sW}, s{sW}, 6
    ''')
    nvm_after_params = 2
    if cfg.upf:
        nvm_after_params += 1
        a(f'''
        s_lshr_b32 s27, s2, 3
        s_lshl_b32 s27, s27, 10
        s_add_u32 s27, s27, s26
        s_lshl_b32 s{sT0}, s{sW}, 18
        s_add_u32 s27, s27, s{sT0}
        v_lshrrev_b32 {vr(tmp + 4)}, 1, {vr(vL)}
        v_lshlrev_b32 {vr(tmp + 4)}, 15, {vr(tmp + 4)}
        v_and_b32 {vr(tmp + 5)}, 1, {vr(vL)}
        v_lshl_add_u32 {vr(tmp + 4)}, {vr(tmp + 5)}, 7, {vr(tmp + 4)}
        s_mov_b64 exec, 0xffff
        buffer_load_dword {vr(junk)}, {vr(tmp + 4)}, s[56:59], s27 offen
        s_mov_b64 exec, -1
        ''')
    stamp()
    tab1 = sum(SLOT[e] << (4 * i) for i, e in enumerate(T1))
    tab2 = sum((SLOT[e] - 8) << (4 * i) for i, e in enumerate(T2))
    t4, t6 = tmp + 4, tmp + 6
    a(f'''
    v_and_b32 {vr(vI)}, 15, v0
    v_lshrrev_b32 {vr(vG)}, 4, {vr(vL)}
    s_mul_i32 s{sSTG}, s{sW}, {STG}
    s_mul_i32 s{sTB}, s{sW}, {TBS}
    s_mul_i32 s{sU}, s{sW}, {UCH}
    s_add_u32 s{sTB}, s{sTB}, {TB0}
    s_add_u32 s{sU}, s{sU}, {UB0}
    s_movk_i32 s{sT0}, {ROW}
    v_lshl_add_u32 {vr(aM)}, {vr(vG)}, 4, s{sSTG}
    v_mad_u32_u24 {vr(aB)}, {vr(vI)}, s{sT0}, {vr(aM)}
    v_lshlrev_b32 {vr(t4)}, 2, {vr(vI)}
    s_mov_b32 s24, {hex(tab1 & 0xffffffff)}
    s_mov_b32 s25, {hex(tab1 >> 32)}
    s_mov_b32 s26, {hex(tab2 & 0xffffffff)}
    s_mov_b32 s27, {hex(tab2 >> 32)}
    v_lshrrev_b64 {vr(t6, 2)}, {vr(t4)}, s[24:25]
    v_and_b32 {vr(t6)}, 15, {vr(t6)}
    v_mad_u32_u24 {vr(aT1)}, {vr(t6)}, s{sT0}, {vr(aM)}
    v_lshrrev_b64 {vr(t6, 2)}, {vr(t4)}, s[26:27]
    v_and_b32 {vr(t6)}, 15, {vr(t6)}
    v_mad_u32_u24 {vr(aT2)}, {vr(t6)}, s{sT0}, {vr(aM)}
    v_lshlrev_b32 {vr(uoff)}, 11, v0
    buffer_load_dwordx4 {vr(UA, 4)}, {vr(uoff)}, s[56:59], s{sUCOL} offen
    buffer_load_dwordx4 {vr(UA + 4, 4)}, {vr(uoff)}, s[56:59], s{sUCOL} offen offset:1024
    v_mov_b32 {vr(DV + 1)}, 0
    v_mov_b32 {vr(t6)}, 0x3c00
    s_mov_b32 m0, s{sU}
    ''')
    z = DV + 1
    for k in acc.values():
        for r in range(4):
            a(f'v_mov_b32 {vr(k + r)}, 0')
    a(f'''
    ds_write_addtid_b32 {vr(z)} offset:0
    ds_write_addtid_b32 {vr(z)} offset:256
    s_mov_b32 m0, s{sTB}
    v_min_u32 {vr(t4 + 1)}, 31, {vr(vL)}
    ds_write_addtid_b32 {vr(z)} offset:2112
    ds_write_addtid_b32 {vr(z)} offset:2144
    ''')
    for k, (sh, w) in enumerate(((4, 1), (8, 2), (8, 3), (8, 4))):
        m = ((1 << (2 * w + 1)) - 1) << (15 + sh - w + 1)
        t = tmp + 8 + k
        a(f'''
        s_mov_b32 s{sT1}, {hex(m)}
        v_bfe_u32 {vr(t)}, s{sT1}, {vr(t4 + 1)}, 2
        v_mul_u32_u24 {vr(t)}, 0x20001, {vr(t)}
        v_and_b32 {vr(t)}, 0x20002, {vr(t)}
        v_mul_u32_u24 {vr(t)}, 0x1fc0, {vr(t)}
        ''')
    a(f'''
    v_lshlrev_b32 {vr(t4 + 1)}, 5, {vr(vG)}
    v_sub_u32 {vr(pa0)}, {vr(t4)}, {vr(t4 + 1)}
    s_add_u32 s{sT1}, s{sTB}, 100
    v_add_u32 {vr(pa0)}, s{sT1}, {vr(pa0)}
    ''')
    for k in range(4):
        a(f'ds_write_addtid_b32 {vr(tmp + 8 + k)} offset:{256 * k}')
    a(f's_mov_b32 m0, s{sSTG}')
    for k in range(4):
        a(f'ds_read2_b32 {vr(BOX[k], 2)}, {vr(pa0)} offset0:{64 * k + 6} offset1:{64 * k + 4}')
        a(f'ds_read2_b32 {vr(BOX[k] + 2, 2)}, {vr(pa0)} offset0:{64 * k + 2} offset1:{64 * k}')
    a(f'''
    ds_write_addtid_b32 {vr(z)} offset:{SLOT['z'] * ROW}
    ds_write_addtid_b32 {vr(t6)} offset:{24 * ROW}
    v_add_u32 {vr(pa1)}, 0x400, {vr(pa0)}
    v_add_u32 {vr(pa2)}, 0x800, {vr(pa0)}
    v_lshlrev_b32 {vr(t4 + 1)}, 4, {vr(vG)}
    v_lshl_add_u32 {vr(ub)}, {vr(vI)}, 5, {vr(t4 + 1)}
    v_add_u32 {vr(ub)}, s{sU}, {vr(ub)}
    v_sub_u32 {vr(t6 + 1)}, {vr(t4)}, {vr(t4 + 1)}
    s_add_u32 s{sT0}, s{sTB}, {R3O - 12}
    s_add_u32 s{sT1}, s{sTB}, {R2O - 24}
    v_add_u32 {vr(r3a)}, s{sT0}, {vr(t6 + 1)}
    v_lshl_add_u32 {vr(r2a)}, {vr(t6 + 1)}, 1, s{sT1}
    v_lshl_add_u32 {vr(aR2)}, {vr(vG)}, 7, {vr(t4)}
    v_lshrrev_b32 {vr(aR3)}, 1, {vr(aR2)}
    s_add_u32 s{sT0}, s{sTB}, {R2O}
    v_add_u32 {vr(aR2)}, s{sT0}, {vr(aR2)}
    v_add_u32 {vr(aR3)}, s{sTB}, {vr(aR3)}
    v_and_b32 {vr(t4 + 1)}, 16, {vr(vL)}
    v_lshl_add_u32 {vr(aP)}, {vr(vI)}, 5, {vr(t4 + 1)}
    v_and_b32 {vr(t4 + 1)}, 32, {vr(vL)}
    v_lshl_add_u32 {vr(aP)}, {vr(t4 + 1)}, 5, {vr(aP)}
    v_add_u32 {vr(aP)}, s{sTB}, {vr(aP)}
    v_mul_u32_u24 {vr(yw)}, 144, {vr(vG)}
    v_lshl_add_u32 {vr(yw)}, {vr(vI)}, 3, {vr(yw)}
    v_add_u32 {vr(yw)}, s{sSTG}, {vr(yw)}
    v_lshrrev_b32 {vr(t4 + 1)}, 2, {vr(vI)}
    v_mul_u32_u24 {vr(yr)}, {STG}, {vr(t4 + 1)}
    v_and_b32 {vr(t4 + 1)}, 3, {vr(vL)}
    v_mul_u32_u24 {vr(t4 + 1)}, 144, {vr(t4 + 1)}
    v_and_b32 {vr(st)}, 0xff, v0
    v_lshrrev_b32 {vr(t6 + 1)}, 4, {vr(st)}
    v_lshlrev_b32 {vr(t6 + 1)}, 3, {vr(t6 + 1)}
    v_add3_u32 {vr(yr)}, {vr(yr)}, {vr(t4 + 1)}, {vr(t6 + 1)}
    v_lshlrev_b32 {vr(st)}, 11, {vr(st)}
    s_mov_b32 s60, s22
    s_mov_b32 s61, s23
    s_mov_b32 s62, 0x400000
    s_mov_b32 s63, 0x20000
    s_and_b32 s{sT0}, s2, 4
    s_lshl_b32 s{sT0}, s{sT0}, 8
    s_add_u32 s{sOCOL}, s{sUCOL}, s{sT0}
    s_add_u32 s{sU2}, s{sUCOL}, 0x100000
    s_mov_b32 s{sSEL0}, 0x05040100
    s_mov_b32 s{sSEL1}, 0x07060302
    s_mov_b32 s{sHI}, 0xffff0000
    s_lshl_b32 s{sM1}, s{sW}, 8
    s_add_u32 s{sM1}, s{sM1}, {UB0 + 512}
    s_add_u32 s{sM2}, s{sM1}, 2048
    s_mov_b32 s{sIT}, 0
    ''')
    chi = 47274 / 32768
    clo = (math.log2(math.e) - chi) * math.log(2)
    a(f'''
    s_mov_b32 s{sCHI}, {hex(f2u(chi))}
    s_mov_b32 s{sCLO}, {hex(f2u(clo))}
    s_cmp_lg_u32 s3, 0
    s_waitcnt lgkmcnt(0)
    ''')
    stamp()
    a(f's_waitcnt vmcnt({nvm_after_params})')
    stamp()
    a.hot = True
    wr, wi = tmp, tmp + 2
    q0, q1, q2, q3 = tmp + 4, tmp + 6, tmp + 8, tmp + 10
    mx, dt = tmp + 12, tmp + 13

    def unpack(dst, src):
        a(f'v_lshlrev_b32 {vr(dst)}, 16, {vr(src)}\nv_and_b32 {vr(dst + 1)}, s{sHI}, {vr(src)}')
    a('s_cbranch_scc1 L_prepB')
    a.cond_begin()
    unpack(q0, P1)
    a(f'v_pk_mul_f32 {vr(q1, 2)}, {vr(q0, 2)}, s[{sCHI}:{sCHI + 1}] op_sel_hi:[1,0]')
    a(f'v_pk_mul_f32 {vr(q0, 2)}, {vr(q0, 2)}, s[{sCLO}:{sCLO + 1}] op_sel_hi:[1,0]')
    a(f'v_exp_f32 {vr(q1)}, {vr(q1)}\nv_exp_f32 {vr(q1 + 1)}, {vr(q1 + 1)}')
    unpack(wr, P3)
    unpack(wi, P4)
    a(f'v_pk_fma_f32 {vr(q1, 2)}, {vr(q1, 2)}, {vr(q0, 2)}, {vr(q1, 2)}')
    a(f'v_cvt_pk_bf16_f32 {vr(P1)}, {vr(q1)}, {vr(q1 + 1)}')
    a('s_branch L_prepC')
    a.cond_end()
    a('L_prepB:')
    a.cond_begin()
    unpack(q0, P3)
    unpack(q1, P4)
    unpack(q2, P5)
    unpack(q3, P6)
    a(f'''
    v_pk_mul_f32 {vr(wr, 2)}, {vr(q1, 2)}, {vr(q3, 2)} neg_lo:[1,0] neg_hi:[1,0]
    v_pk_mul_f32 {vr(wi, 2)}, {vr(q1, 2)}, {vr(q2, 2)}
    v_pk_fma_f32 {vr(wr, 2)}, {vr(q0, 2)}, {vr(q2, 2)}, {vr(wr, 2)}
    v_pk_fma_f32 {vr(wi, 2)}, {vr(q0, 2)}, {vr(q3, 2)}, {vr(wi, 2)}
    ''')
    a.cond_end()
    a('.p2align 3')
    a('L_prepC:')
    dpp = [f'v_max_u32_dpp {vr(mx)}, {vr(mx)}, {vr(mx)} {m} bank_mask:0xf' for m in (
        'row_shr:1 row_mask:0xf', 'row_shr:2 row_mask:0xf', 'row_shr:4 row_mask:0xf', 'row_shr:8 row_mask:0xf',
        'row_bcast:15 row_mask:0xa', 'row_bcast:31 row_mask:0xc')]
    a(f'''
    v_max3_f32 {vr(mx)}, |{vr(wr)}|, |{vr(wr + 1)}|, |{vr(wi)}|
    v_max_f32_e64 {vr(mx)}, {vr(mx)}, |{vr(wi + 1)}|
    v_mul_f32 {vr(dt)}, s{sCHI}, {vr(LD)}
    v_mul_f32 {vr(LD)}, s{sCLO}, {vr(LD)}
    {dpp[0]}
    v_exp_f32 {vr(dt)}, {vr(dt)}
    v_lshlrev_b32 {vr(q0)}, 16, {vr(P1)}
    {dpp[1]}
    v_fma_f32 {vr(dt)}, {vr(dt)}, {vr(LD)}, {vr(dt)}
    v_cvt_pk_bf16_f32 {vr(dt)}, {vr(dt)}, {vr(dt)}
    {dpp[2]}
    v_and_b32 {vr(dt)}, s{sHI}, {vr(dt)}
    v_and_b32 {vr(q0 + 1)}, s{sHI}, {vr(P1)}
    {dpp[3]}
    v_mul_f32 {vr(q2)}, s{sCX}, {vr(dt)}
    v_mul_f32 {vr(q3)}, 0.15915494, {vr(dt)}
    {dpp[4]}
    v_lshlrev_b32 {vr(q1)}, 16, {vr(P2)}
    v_and_b32 {vr(q1 + 1)}, s{sHI}, {vr(P2)}
    {dpp[5]}
    v_pk_mul_f32 {vr(X, 2)}, {vr(q0, 2)}, {vr(q2, 2)} op_sel_hi:[1,0]
    v_readlane_b32 s{sT0}, {vr(mx)}, 63
    v_pk_mul_f32 {vr(Y, 2)}, {vr(q1, 2)}, {vr(q3, 2)} op_sel_hi:[1,0]
    s_lshr_b32 s{sT0}, s{sT0}, 23
    s_max_u32 s{sT0}, s{sT0}, 5
    s_sub_u32 s{sSC}, 258, s{sT0}
    s_lshl_b32 s{sSC}, s{sSC}, 23
    s_sub_u32 s{sINV}, s{sT0}, s{sEXA}
    s_lshl_b32 s{sINV}, s{sINV}, 23
    v_fma_mixlo_f16 {vr(Wp)}, {vr(wr)}, s{sSC}, 0
    v_fma_mixlo_f16 {vr(Wp + 1)}, {vr(wr + 1)}, s{sSC}, 0
    v_fma_mixhi_f16 {vr(Wp)}, -{vr(wi)}, s{sSC}, 0
    v_fma_mixhi_f16 {vr(Wp + 1)}, -{vr(wi + 1)}, s{sSC}, 0
    v_mul_f32 {vr(KS)}, s{sINV}, {vr(dt)}
    ''')
    stamp()
    a('.p2align 3')
    a('L_kg:')
    R, RT = tmp, tmp + 2
    tq = [tmp + 4, tmp + 5, tmp + 6, tmp + 7]
    seed = {p: P.alloc() for p in (1, 4, 8, 16, 32, 64, 128, 256, 512)}
    G = {0: Wp}
    E = {1: seed[8], 2: seed[16], 4: seed[32], 8: seed[64]}
    pend = []
    vt = [0]
    tqi = [0]

    def flush(force=False):
        if force or (vt[0] >= cfg.grp_time and len(pend) >= 2):
            n = len(pend) if force else min(len(pend), max(2, (vt[0] - 8) // 4 + (1 if len(pend) > 4 else 0)))
            for _ in range(n):
                a(pend.pop(0))
            vt[0] = 0

    def valu(t, c=4):
        a(t)
        vt[0] += c

    def wrow(reg, row):
        pend.append(f'ds_write_addtid_b32 {vr(reg)} offset:{row * ROW}')

    def cmul(d, x, y, conj):
        t = tq[tqi[0] % 4]
        tqi[0] += 1
        if conj:
            return [f'v_pk_mul_f16 {vr(t)}, {vr(x)}, {vr(y)} op_sel:[1,1] op_sel_hi:[1,0]',
                    f'v_pk_fma_f16 {vr(d)}, {vr(x)}, {vr(y)}, {vr(t)} op_sel:[0,0,0] op_sel_hi:[0,1,1] neg_hi:[1,0,0]']
        return [f'v_pk_mul_f16 {vr(t)}, {vr(x)}, {vr(y)} op_sel:[1,1] op_sel_hi:[1,0] neg_lo:[1,0]',
                f'v_pk_fma_f16 {vr(d)}, {vr(x)}, {vr(y)}, {vr(t)} op_sel:[0,0,0] op_sel_hi:[0,1,1]']

    def g(e, s, p):
        G[e] = P.alloc()
        for t in cmul(G[e], G[s], seed[p], True):
            valu(t)
        wrow(G[e], SLOT[e])
        flush()

    def eprod(i):
        hb = 1 << (i.bit_length() - 1)
        E[i] = P.alloc()
        for t in cmul(E[i], E[i - hb], E[hb], False):
            valu(t)
        wrow(E[i], 24 + i)
        flush()

    def sq(p):
        valu(f'v_pk_mul_f32 {vr(RT, 2)}, {vr(R, 2)}, {vr(R, 2)} op_sel:[1,1] op_sel_hi:[1,0] neg_lo:[1,0]')
        valu(f'v_pk_fma_f32 {vr(R, 2)}, {vr(R, 2)}, {vr(R, 2)}, {vr(RT, 2)} op_sel:[0,0,0] op_sel_hi:[0,1,1]')
        if p in seed:
            valu(f'v_cvt_pk_f16_f32 {vr(seed[p])}, {vr(R)}, {vr(R + 1)}')
            if p in (8, 16, 32, 64):
                wrow(seed[p], 24 + p // 8)
            if p == 128:
                wrow(seed[p], SLOT['M'])
        flush()

    def rd(F, addr, row0):
        for ks in range(4):
            pend.append(f'ds_read_b128 {vr(F[ks], 4)}, {vr(addr)} offset:{row0 * ROW + 64 * ks}')

    wrow(G[0], SLOT[0])
    valu(f'v_cos_f32 {vr(R)}, {vr(Y)}', 8)
    valu(f'v_sin_f32 {vr(R + 1)}, {vr(Y)}', 8)
    valu(f'v_exp_f32_e64 {vr(RT)}, {vr(X)}', 8)
    flush(True)
    valu(f'v_pk_mul_f32 {vr(R, 2)}, {vr(R, 2)}, {vr(RT, 2)} op_sel_hi:[1,0]')
    valu(f'v_cvt_pk_f16_f32 {vr(seed[1])}, {vr(R)}, {vr(R + 1)}')
    g(1, 0, 1); sq(2); g(2, 1, 1); sq(4); g(3, 2, 1); sq(8); g(4, 0, 4); g(5, 1, 4); sq(16)
    g(6, 2, 4); g(7, 3, 4); sq(32); eprod(3); g(8, 0, 8); sq(64); eprod(5); eprod(6); eprod(7); sq(128)
    rd(FM, aM, SLOT['M'])
    eprod(9); eprod(10); sq(256); eprod(11); eprod(12); eprod(13); sq(512); eprod(14); eprod(15)
    rd(FB, aB, 24)
    g(256, 0, 256); g(258, 2, 256); g(260, 4, 256); g(262, 6, 256); g(264, 8, 256)
    rd(FT1, aT1, 0)
    g(516, 4, 512); g(520, 8, 512); g(772, 260, 512); g(776, 264, 512)
    g(1032, 520, 512); g(1288, 776, 512); g(1544, 1032, 512); g(1800, 1288, 512)
    rd(FT2, aT2, 8)
    flush(True)
    prods = []
    for ks in range(4):
        for r in range(4):
            prods += cmul(FM[ks] + r, FB[ks] + r, FM[ks] + r, False)
    order = [(1, 0, 0, 2), (1, 0, 1, 2), (1, 0, 2, 2), (1, 0, 3, 2), (2, 0, 0, 2), (1, 1, 0, 2), (2, 1, 0, 2), (2, 0, 1, 2),
             (2, 0, 2, 2), (1, 1, 1, 2), (2, 1, 1, 2), (2, 0, 3, 4), (1, 1, 2, 3), (2, 1, 2, 3), (1, 1, 3, 0), (2, 1, 3, 0)]
    a.hot = False
    ids = {tuple(sorted(d))[0][1]: oid for oid, d in a.dsq if d}
    for n, (t, j, ks, npr) in enumerate(order):
        if n == 0:
            a.wait_ds(ids[FT1[3]])
        if n == 4:
            a.wait_ds(ids[FT2[1]])
        if n == 8:
            a.wait_ds(ids[FT2[3]])
        if n == 14:
            a(f'v_mov_b32 {vr(Y)}, {vr(Y + 1)}\nv_mov_b32 {vr(X)}, {vr(X + 1)}')
        FA = (FT1 if t == 1 else FT2)[ks]
        FBx = (FB if j == 0 else FM)[ks]
        a(f'v_mfma_f32_16x16x32_f16 {vr(acc[t, j], 4)}, {vr(FA, 4)}, {vr(FBx, 4)}, {vr(acc[t, j], 4)}')
        for _ in range(npr):
            a(prods.pop(0))
        if n == 14:
            a(f'v_mov_b32 {vr(Wp)}, {vr(Wp + 1)}\ns_cmp_lg_u32 s{sIT}, 0')
    assert not prods
    a(f'''
    s_cbranch_scc1 L_kg_done
    s_mov_b32 s{sIT}, 1
    s_bitcmp1_b32 s2, 3
    s_cbranch_scc1 L_ld2
    s_cmp_ge_u32 s{sW}, 2
    s_cbranch_scc1 L_kg
L_ld2:
    buffer_load_dwordx4 {vr(UBr, 4)}, {vr(uoff)}, s[56:59], s{sU2} offen
    buffer_load_dwordx4 {vr(UBr + 4, 4)}, {vr(uoff)}, s[56:59], s{sU2} offen offset:1024
    ''')
    a.cond_begin()
    a('s_branch L_kg')
    a.cond_end()
    a('.p2align 3')
    a('L_kg_done:')
    a.hot = True
    stamp()

    def stage_ops(U, t0):
        v, d = [], []
        for ch in range(8):
            k = ch // 2
            v.append(f'v_perm_b32 {vr(t0 + ch)}, {vr(U + 4 + k)}, {vr(U + k)}, s{sSEL1 if ch & 1 else sSEL0}')
            d.append(f'ds_write_addtid_b32 {vr(t0 + ch)} offset:{ch * UCH}')
        return v, d
    a(f'''
    s_bitcmp1_b32 s2, 3
    s_waitcnt vmcnt(2)
    s_cbranch_scc1 L_st1
    s_cmp_ge_u32 s{sW}, 2
    s_waitcnt vmcnt(0)
    s_cbranch_scc1 L_st1
    ''')
    a.cond_begin()
    v, d = stage_ops(UBr, tmp + 8)
    a(f's_mov_b32 m0, s{sM2}')
    a('\n'.join(v + d))
    a.cond_end()
    a('.p2align 3')
    a('L_st1:')
    v, d = stage_ops(UA, tmp)
    a(f's_mov_b32 m0, s{sM1}')
    a('\n'.join(v[:4] + d[:2] + v[4:] + d[2:5]))
    PK = [FT1[0], FT1[1]]
    K2, K3 = FT1[2], FT1[2] + 2
    first = True
    stg_last = None
    for key in ((1, 0), (2, 0), (1, 1), (2, 1)):
        for h in range(2):
            r = acc[key] + 2 * h
            if first:
                a(f'v_pk_fma_f32 {vr(r, 2)}, {vr(r, 2)}, {vr(KS, 2)}, {vr(DV, 2)} op_sel_hi:[1,0,1]')
                first = False
            else:
                a(f'v_pk_mul_f32 {vr(r, 2)}, {vr(r, 2)}, {vr(KS, 2)} op_sel_hi:[1,0]')
        if key == (2, 0):
            stg_last = a('\n'.join(d[5:]))
    for j in range(2):
        v5 = [acc[1, j] + r for r in range(4)] + [acc[2, j]]
        for r in range(4):
            a(f'v_cvt_pk_bf16_f32 {vr(PK[j] + r)}, {vr(v5[r + 1])}, {vr(v5[r])}')
        if j == 0:
            a(f'ds_write_b128 {vr(aP)}, {vr(PK[0], 4)} offset:64')
    a(f'''
    v_cvt_pk_bf16_f32 {vr(K2)}, {vr(acc[2, 0] + 1)}, {vr(acc[2, 0] + 2)}
    v_cvt_pk_bf16_f32 {vr(K2 + 1)}, {vr(acc[2, 1] + 1)}, {vr(acc[2, 1] + 2)}
    v_cvt_pk_bf16_f32 {vr(K3)}, {vr(acc[2, 0] + 3)}, {vr(acc[2, 1] + 3)}
    ds_write_b128 {vr(aP)}, {vr(PK[1], 4)} offset:{64 + 512}
    ds_write2_b32 {vr(aR2)}, {vr(K2)}, {vr(K2 + 1)} offset0:0 offset1:16
    ds_write_b16 {vr(aR3)}, {vr(K3)} offset:{R3O}
    ds_write_b16_d16_hi {vr(aR3)}, {vr(K3)} offset:{R3O + 32}
    s_mov_b64 exec, 1
    ds_write_b16_d16_hi {vr(aP)}, {vr(PK[0])} offset:60
    s_bfm_b64 exec, 1, 63
    ds_write2_b32 {vr(aP)}, {vr(PK[1] + 3)}, {vr(PK[1] + 3)} offset0:148 offset1:149
    ds_write_b16 {vr(aP)}, {vr(PK[1] + 3)} offset:602
    s_bfm_b64 exec, 1, 31
    ds_write_b16_d16_hi {vr(aP)}, {vr(K2 + 1)} offset:1760
    ds_write_b16_d16_hi {vr(aP)}, {vr(K2 + 1)} offset:1764
    ds_write_b16_d16_hi {vr(aP)}, {vr(K2 + 1)} offset:1766
    ds_write_b16_d16_hi {vr(aP)}, {vr(K2 + 1)} offset:1770
    s_mov_b64 exec, -1
    ''')
    a.wait_ds(stg_last)
    a('s_bitcmp1_b32 s2, 3')
    a.hot = False
    stamp()
    a('s_barrier')
    stamp()
    a('s_cbranch_scc1 L_hi')
    dsq0 = list(a.dsq)
    ts0 = nts[0]
    hiwater = [P.hi]

    def conv(role):
        a.dsq = list(dsq0)
        nts[0] = ts0
        Q = convP.copy()
        Q.release(UA, 8)
        if role == 'lo':
            Q.release(UBr, 8)
        tiles = [0, 1, 2, 3, 4] if role == 'lo' else [5, 6, 7]
        slots = []

        def W16(tau): return ('U', 512 * tau - 32)
        def W24(tau): return ('U', 512 * tau - 48)

        def box2(tau):
            for ph, (w, b) in enumerate(((W16, 0), (W16, 1), (W24, 0), (W24, 1))):
                slots.append(('mf', ('D', tau, ph), w(tau), ('BOX', b)))

        def box3(tau):
            slots.append(('mf', ('D', tau, 4), W16(tau), ('BOX', 2)))
            slots.append(('mf', ('D', tau, 5), W24(tau), ('BOX', 3)))

        def far2(tau):
            for h in range(2):
                for mu in (2, 3, 4):
                    if tau + mu in tiles:
                        slots.append(('mf', ('Y', tau + mu), ('V', tau, h), ('R2', mu, h)))

        def far3(tau):
            for mu in (4, 5, 6, 7):
                if tau + mu in tiles:
                    slots.append(('mf', ('Y', tau + mu), ('V', tau, 2), ('R3', mu)))

        def spec(t):
            slots.append(('mf', ('Y', t), ('A', 17), W16(t - 4)))

        def near(t, ms=None):
            for m in (ms if ms is not None else range(min(16, 8 * t + 7), -1, -1)):
                slots.append(('mf', ('Y', t), ('A', m), ('U', 64 * (8 * t - m) - 32)))
        if role == 'lo':
            box2(0); box3(0); box2(1); box2(2)
            far2(0); far3(0); far2(1); far2(2); spec(4)
            for t in tiles:
                near(t)
                slots.append(('fin', t))
        else:
            box2(1); box3(1); box3(0); box2(2); box3(2)
            far2(1); far3(1); far3(0); spec(5)
            box2(3); box3(3)
            far2(2); far3(2); spec(6)
            slots.append(('stage2',))
            far2(3); far3(3); spec(7); near(5, [16])
            slots.append(('bar2',))
            near(5, range(15, 7, -1)); box2(4); near(5, range(7, -1, -1))
            slots.append(('fin', 5))
            far2(4); box2(5); near(6)
            slots.append(('fin', 6))
            far2(5); near(7)
            slots.append(('fin', 7))
        uses = {}
        for s, sl in enumerate(slots):
            if sl[0] == 'mf':
                new = list(sl)
                for pos in (2, 3):
                    k = sl[pos]
                    if k[0] == 'U':
                        gen_, last = uses.get(k, (0, s))
                        if s - last > 30:
                            gen_ += 1
                        uses[k] = (gen_, s)
                        new[pos] = k + (gen_,)
                slots[s] = tuple(new)
        first, last = {}, {}
        for s, sl in enumerate(slots):
            if sl[0] == 'mf':
                for k in sl[1:]:
                    first.setdefault(k, s)
                    last[k] = s
        bar2 = [s for s, sl in enumerate(slots) if sl[0] == 'bar2']
        bar2 = bar2[0] if bar2 else -1
        reg = {('BOX', k): BOX[k] for k in range(4)}
        loads = []
        for k in sorted(first, key=lambda k: first[k]):
            if k[0] in ('A', 'U', 'R2', 'R3'):
                loads.append([k, 0])

        def load_ins(k):
            r = reg[k]
            if k[0] == 'U':
                return [(f'ds_read_b128 {vr(r, 4)}, {vr(ub)} offset:{512 + k[1]}', 4)]
            if k[0] == 'A':
                off = 546 if k[1] == 17 else 32 * k[1]
                base = (pa0, pa1, pa2)[off // 256]
                o = off % 256
                return [(f'ds_read2_b32 {vr(r, 2)}, {vr(base)} offset0:{o + 6} offset1:{o + 4}', 4),
                        (f'ds_read2_b32 {vr(r + 2, 2)}, {vr(base)} offset0:{o + 2} offset1:{o}', 4)]
            if k[0] == 'R2':
                o = 8 * (16 * (k[1] - 2) + 3 - 2 * k[2])
                return [(f'ds_read_b64 {vr(r, 2)}, {vr(r2a)} offset:{o}', 2),
                        (f'ds_read_b64 {vr(r + 2, 2)}, {vr(r2a)} offset:{o - 8}', 2)]
            o = 16 * (k[1] - 4)
            return [(f'ds_read2_b32 {vr(r, 2)}, {vr(r3a)} offset0:{o + 3} offset1:{o + 2}', 4),
                    (f'ds_read2_b32 {vr(r + 2, 2)}, {vr(r3a)} offset0:{o + 1} offset1:{o}', 4)]

        def needs_stage2(k):
            return role == 'hi' and k[0] == 'U' and k[1] // 2 + 271 >= 1024

        def issue(item, must=False):
            k = item[0]
            if k not in reg:
                if not must and len(Q.free) < 28:
                    return None
                r = Q.alloc(4)
                assert r is not None, 'out of registers'
                reg[k] = r
            ins = load_ins(k)
            a(ins[item[1]][0])
            c = ins[item[1]][1]
            item[1] += 1
            if item[1] == len(ins):
                loads.remove(item)
            return c

        def do_loads(s, budget, nmax):
            spent, n = 0, 0
            for item in list(loads):
                k = item[0]
                if first[k] - s > cfg.look:
                    break
                if needs_stage2(k) and s < bar2:
                    continue
                while item in loads and spent < budget and n < nmax:
                    c = issue(item)
                    if c is None:
                        return
                    spent += c
                    n += 1
            if n == 0:
                for item in loads:
                    if item[0][0] != 'U':
                        issue(item)
                        break

        vq = []
        dq = []
        evq = []
        ytmp = Q.alloc(2)
        sdat = Q.alloc(4)

        def pop_v():
            _, text, key, frees, cb = vq.pop(0)
            a(text)
            for r, n in frees:
                Q.release(r, n)
            if cb:
                cb()

        def make_v(tau, which, s):
            if which == 2:
                r = reg[('V', tau, 2)] = Q.alloc(4)
                d0, d1 = reg[('D', tau, 4)], reg[('D', tau, 5)]
                for i in range(4):
                    vq.append([len(a.ins) + 8, f'v_cvt_pk_bf16_f32 {vr(r + i)}, {vr(d0 + i)}, {vr(d1 + i)}', ('V', tau, 2), [(d0, 4), (d1, 4)] if i == 3 else [], None])
            else:
                d = [reg[('D', tau, p)] for p in range(4)]
                for h in range(2):
                    r = reg[('V', tau, h)] = Q.alloc(4)
                    for i in range(4):
                        kk = 2 * h + i // 2
                        p = 2 * (i % 2)
                        vq.append([len(a.ins) + 8, f'v_cvt_pk_bf16_f32 {vr(r + i)}, {vr(d[p] + kk)}, {vr(d[p + 1] + kk)}', ('V', tau, h),
                                   [(x, 4) for x in d] if (h, i) == (1, 3) else [], None])

        def store_block(t):
            k = tiles.index(t)
            lab = f'L_ns_{role}{t}'
            a(f's_bitcmp1_b32 s{sW}, 2')
            a('s_barrier')
            a(f's_cbranch_scc{1 if k % 2 == 0 else 0} {lab}')
            a.cond_begin()
            a(f'''
            ds_read_b64_tr_b16 {vr(sdat, 2)}, {vr(yr)} offset:{YT * k}
            ds_read_b64_tr_b16 {vr(sdat + 2, 2)}, {vr(yr)} offset:{YT * k + 4 * STG}
            s_add_u32 s{sT0}, s{sOCOL}, {t * 256 * 2048}
            s_waitcnt lgkmcnt(0)
            buffer_store_dwordx4 {vr(sdat, 4)}, {vr(st)}, s[60:63], s{sT0} offen
            ''')
            a.cond_end()
            a(f'{lab}:')
            stamp()

        def service(s, final=False):
            nd = 0
            while dq and (final or (dq[0][0] <= s and nd < 2)):
                _, text, cb = dq.pop(0)
                oid = a(text)
                nd += 1
                if cb:
                    cb(oid)
            if not final:
                do_loads(s, 8, 2 - nd if nd else 2)
            nv = 0
            while vq and (final or (vq[0][0] <= len(a.ins) and nv < 2)):
                pop_v()
                nv += 1
            if final and dq:
                return service(s, True)
            while evq and (final or evq[0][0] <= s):
                _, oid, t = evq.pop(0)
                a.wait_ds(oid)
                store_block(t)

        started = set()
        cur = [0]
        stage_last = [None]
        do_loads(0, 64, 8)
        for s, sl in enumerate(slots):
            cur[0] = s
            if sl[0] == 'mf':
                _, dk, ak, bk = sl
                for k in (ak, bk):
                    for item in [it for it in loads if it[0] == k]:
                        while item in loads:
                            issue(item, True)
                    while any(v[2] == k for v in vq):
                        pop_v()
                if dk not in reg:
                    reg[dk] = Q.alloc(4)
                    assert reg[dk] is not None
                c = vr(reg[dk], 4) if dk in started else '0'
                started.add(dk)
                a(f'v_mfma_f32_16x16x32_bf16 {vr(reg[dk], 4)}, {vr(reg[ak], 4)}, {vr(reg[bk], 4)}, {c}')
                for k in (ak, bk):
                    if last[k] == s:
                        Q.release(reg[k], 4)
                if dk[0] == 'D' and dk[2] == 3:
                    make_v(dk[1], 0, s)
                if dk[0] == 'D' and dk[2] == 5:
                    make_v(dk[1], 2, s)
                service(s)
            elif sl[0] == 'fin':
                t = sl[1]
                y = reg[('Y', t)]
                k = tiles.index(t)

                def after(t=t, k=k, s=s):
                    dq.append([0, f'ds_write_b64 {vr(yw)}, {vr(ytmp, 2)} offset:{YT * k}',
                               lambda oid: evq.append([cur[0] + 4, oid, t])])
                vq.append([len(a.ins) + 8, f'v_cvt_pk_bf16_f32 {vr(ytmp)}, {vr(y)}, {vr(y + 1)}', None, [], None])
                vq.append([len(a.ins) + 8, f'v_cvt_pk_bf16_f32 {vr(ytmp + 1)}, {vr(y + 2)}, {vr(y + 3)}', None, [(y, 4)], after])
            elif sl[0] == 'stage2':
                t0 = Q.alloc(8)
                v, d = stage_ops(UBr, t0)
                stamp()
                a(f's_waitcnt vmcnt(0)\ns_mov_b32 m0, s{sM2}')
                stamp()
                newv = []
                for i in range(8):
                    def after(i=i):
                        def cb(oid):
                            stage_last[0] = oid
                            Q.release(t0 + i, 1)
                        dq.append([0, d[i], cb])
                    newv.append([0, v[i], 'stg', [(UBr, 8)] if i == 7 else [], after])
                vq[0:0] = newv
            elif sl[0] == 'bar2':
                while any(v[2] == 'stg' for v in vq):
                    pop_v()
                while dq:
                    _, text, cb = dq.pop(0)
                    cb(a(text))
                a.wait_ds(stage_last[0])
                a('s_barrier')
                stamp()
                do_loads(s, 64, 6)
        service(len(slots), True)
        hiwater.append(Q.hi)
        finish()

    def finish():
        if cfg.amp >= 0:
            lab = f'L_spin{len(hiwater)}'
            a('s_waitcnt vmcnt(0)')
            stamp()
            k = min(cfg.amp, nts[0] - 1)
            if cfg.ampw >= 0:
                a(f's_cmp_lg_u32 s2, {cfg.ampw}\ns_cbranch_scc1 L_end')
            a(f'''
            s_memrealtime s[24:25]
            s_waitcnt lgkmcnt(0)
            s_sub_u32 s{sT0}, s{64 + 2 * k}, s64
            s_mul_i32 s{sT0}, s{sT0}, 10
{lab}:
            s_sleep 8
            s_memrealtime s[26:27]
            s_waitcnt lgkmcnt(0)
            s_sub_u32 s26, s26, s24
            s_cmp_lt_u32 s26, s{sT0}
            s_cbranch_scc1 {lab}
            ''')
        if cfg.ts or cfg.dump:
            a('s_waitcnt vmcnt(0)')
            stamp()
            a(f'''
            s_load_dwordx2 s[24:25], s[0:1], 144
            s_waitcnt lgkmcnt(0)
            s_mov_b32 s26, 0x10000000
            s_mov_b32 s27, 0x20000
            ''')
        if cfg.ts:
            a(f's_lshl_b32 s{sT0}, s2, 3\ns_add_u32 s{sT0}, s{sT0}, s{sW}\ns_lshl_b32 s{sT0}, s{sT0}, 7\nv_mov_b32 v2, s{sT0}')
            for k in range(nts[0]):
                a(f's_sub_u32 s{sT1}, s{64 + 2 * k}, s64\nv_mov_b32 v3, s{sT1}\nbuffer_store_dword v3, v2, s[24:27], 0 offen offset:{4 * k}')
        if cfg.dump:
            lab = f'L_dump{len(hiwater)}'
            a(f'''
            s_barrier
            v_mbcnt_lo_u32_b32 v2, -1, 0
            v_mbcnt_hi_u32_b32 v2, -1, v2
            s_lshl_b32 s{sT0}, s{sW}, 6
            v_add_u32 v2, s{sT0}, v2
            v_lshlrev_b32 v2, 2, v2
            s_mul_i32 s{sT0}, s2, 163840
            s_add_u32 s{sT0}, s{sT0}, 0x100000
            s_mov_b32 s{sT1}, 0
{lab}:
            ds_read_b32 v3, v2
            s_waitcnt lgkmcnt(0)
            buffer_store_dword v3, v2, s[24:27], s{sT0} offen
            v_add_u32 v2, 2048, v2
            s_add_u32 s{sT1}, s{sT1}, 1
            s_cmp_lt_u32 s{sT1}, {(LDS + 2047) // 2048}
            s_cbranch_scc1 {lab}
            ''')
        a('s_endpgm')

    conv('lo')
    a('.p2align 3')
    a('L_hi:')
    conv('hi')
    a('L_end:\ns_endpgm')
    a.hazards()
    a.align8()
    size = a.measure()
    nv = max(hiwater)
    head = f'; @launch grid=(256,1,1) block=(512,1,1) lds={LDS}\n'
    head += f'''.amdgcn_target "amdgcn-amd-amdhsa--gfx950"
.text
.globl {NAME}_kernel
.p2align 8
.type {NAME}_kernel,@function
{NAME}_kernel:
'''
    pad = ''
    if size < 8192 + 256:
        pad = ''.join('    s_endpgm\n' for _ in range((8192 + 256 - size) // 4))
    tail = f'''.section .rodata,"a"
.p2align 6
.amdhsa_kernel {NAME}_kernel
  .amdhsa_next_free_vgpr 256
  .amdhsa_next_free_sgpr 102
  .amdhsa_accum_offset 256
  .amdhsa_group_segment_fixed_size 0
  .amdhsa_kernarg_size 152
  .amdhsa_user_sgpr_count 2
  .amdhsa_user_sgpr_kernarg_segment_ptr 1
  .amdhsa_system_sgpr_workgroup_id_x 1
.end_amdhsa_kernel
'''
    print(f'code size {size} B, vgpr highwater {hiwater}, stamps {nts[0]}, LDS {LDS}', file=sys.stderr)
    return head + a.text() + pad + tail


if __name__ == '__main__':
    cfg = Cfg()
    out = sys.argv[1]
    for kv in sys.argv[2:]:
        k, v = kv.split('=')
        setattr(cfg, k, type(getattr(cfg, k))(int(v)))
    open(out, 'w').write(gen(cfg))
```

```python
import sys, struct, math, itertools
sys.path.insert(0, 'work')
from asmlib import *

NAME = "concat_heads__ssm_conv_s4d__ssm_conv_s4__prompt"


def f2u(x):
    return struct.unpack('<I', struct.pack('<f', x))[0]


ROW = 288
STG = 11584
UB0 = 8 * STG
UCH = 4608
TB0 = UB0 + 8 * UCH
TBS = 3168
R2O, R3O = 2400, 2912
LDS = TB0 + 8 * TBS
YT = 640

T1 = [0, 1, 2, 3, 4, 5, 6, 7, 256, 256, 258, 260, 260, 260, 262, 264]
T2 = [4, 516, 520, 1032, 8, 772, 776, 1288, 260, 'z', 'z', 1544, 264, 'z', 'z', 1800]


SLOT = {0: 5, 1: 3, 2: 14, 3: 15, 4: 11, 5: 6, 6: 7, 7: 4, 256: 1, 258: 13, 260: 8, 262: 2, 264: 12, 516: 9, 520: 16,
        1032: 21, 8: 20, 776: 17, 1288: 19, 'z': 22, 1544: 10, 1800: 18, 772: 23, 'M': 0}


class Cfg:
    ts = False
    dump = False
    grp_time = 16
    look = 6
    codepf = True
    upf = True
    amp = -1
    ampw = -1
    rt = 0
    twice = 0


def gen(cfg):
    a = Asm()
    P = Pool(1, 256)
    nts = [0]

    def stamp():
        if cfg.ts or cfg.amp >= 0:
            k = nts[0]
            a(f's_memtime s[{64 + 2 * k}:{65 + 2 * k}]')
            nts[0] += 1

    sW, sUCOL, sOCOL, sSTG, sTB, sU, sSEL0, sSEL1 = 32, 33, 34, 35, 36, 37, 38, 39
    sCHI, sCLO, sCX, sSC, sINV, sT0, sT1, sIT = 40, 42, 44, 45, 46, 48, 49, 50
    sHI, sEXA, sU2, sM1, sM2 = 51, 52, 53, 54, 55

    UA = P.alloc(8, 4)
    UBr = P.alloc(8, 4)
    BOX = [P.alloc(4) for _ in range(4)]
    ub, pa0, pa1, pa2, r2a, r3a, yw, yr, st = [P.alloc() for _ in range(9)]
    convP = P.copy()
    acc = {(t, j): P.alloc(4) for t in (1, 2) for j in (0, 1)}
    FT1, FT2, FB, FM = [[P.alloc(4) for _ in range(4)] for _ in range(4)]
    aM, aB, aT1, aT2, aP, aR2, aR3, uoff = [P.alloc() for _ in range(8)]
    P1, P2, P3, P4, P5, P6, LD = [P.alloc() for _ in range(7)]
    DV = P.alloc(2)
    KS = P.alloc(2)
    X = P.alloc(2)
    Y = P.alloc(2)
    Wp = P.alloc(2)
    tmp = P.alloc(16, 2)
    vL, vI, vG, poff, coff, junk = [P.alloc() for _ in range(6)]

    if cfg.rt:
        a('s_memrealtime s[98:99]')
    stamp()
    a(f'''
    s_and_b32 s3, s2, 4
    s_mul_i32 s3, s3, 14
    s_load_dwordx16 s[4:19], s[0:1], s3
    s_load_dwordx4 s[20:23], s[0:1], 120
    s_cmpk_ge_u32 s2, 0x100
    s_cbranch_scc1 L_end
    ''')
    if cfg.codepf:
        a(f'''
        s_getpc_b64 s[24:25]
        v_mov_b32 v1, 0
        v_lshl_add_u64 {vr(tmp, 2)}, v[0:1], 4, s[24:25]
        global_load_dword {vr(junk)}, {vr(tmp, 2)}, off offset:64
        ''')
    a(f'''
    s_and_b32 s26, s2, 3
    s_lshl_b32 s26, s26, 8
    s_andn2_b32 s27, s2, 15
    s_or_b32 s{sUCOL}, s26, s27
    s_lshl_b32 s27, s{sUCOL}, 7
    v_lshl_add_u32 {vr(poff)}, v0, 2, s27
    v_lshrrev_b32 {vr(coff)}, 8, {vr(poff)}
    v_lshlrev_b32 {vr(coff)}, 1, {vr(coff)}
    v_mov_b32 {vr(LD)}, 0
    v_mov_b32 {vr(DV)}, 0
    s_cmp_lg_u32 s3, 0
    s_waitcnt lgkmcnt(0)
    s_cbranch_scc0 L_noB
    global_load_dword {vr(P5)}, {vr(poff)}, s[14:15]
    global_load_dword {vr(P6)}, {vr(poff)}, s[16:17]
L_noB:
    global_load_dword {vr(P3)}, {vr(poff)}, s[10:11]
    global_load_dword {vr(P4)}, {vr(poff)}, s[12:13]
    global_load_dword {vr(P1)}, {vr(poff)}, s[6:7]
    s_cselect_b64 s[28:29], s[18:19], s[14:15]
    s_cselect_b64 s[30:31], s[20:21], s[16:17]
    global_load_short_d16_hi {vr(LD)}, {vr(coff)}, s[28:29]
    global_load_dword {vr(P2)}, {vr(poff)}, s[8:9]
    s_mov_b64 exec, 1
    global_load_short_d16_hi {vr(DV)}, {vr(coff)}, s[30:31]
    s_mov_b64 exec, -1
    s_cselect_b32 s{sCX}, {hex(f2u(math.log2(math.e)))}, 0
    s_cselect_b32 s{sEXA}, 4, 3
    s_cbranch_scc1 L_cxB
    s_mov_b32 s{sCX}, {hex(f2u(-math.log2(math.e)))}
L_cxB:
    v_readfirstlane_b32 s{sW}, v0
    v_and_b32 {vr(vL)}, 63, v0
    s_mov_b32 s56, s4
    s_mov_b32 s57, s5
    s_mov_b32 s58, 0x200000
    s_mov_b32 s59, 0x20000
    s_lshr_b32 s{sW}, s{sW}, 6
    ''')
    nvm_after_params = 2
    if cfg.upf:
        nvm_after_params += 1
        a(f'''
        s_lshr_b32 s27, s2, 3
        s_lshl_b32 s27, s27, 10
        s_add_u32 s27, s27, s26
        s_lshl_b32 s{sT0}, s{sW}, 18
        s_add_u32 s27, s27, s{sT0}
        v_lshrrev_b32 {vr(tmp + 4)}, 1, {vr(vL)}
        v_lshlrev_b32 {vr(tmp + 4)}, 15, {vr(tmp + 4)}
        v_and_b32 {vr(tmp + 5)}, 1, {vr(vL)}
        v_lshl_add_u32 {vr(tmp + 4)}, {vr(tmp + 5)}, 7, {vr(tmp + 4)}
        s_mov_b64 exec, 0xffff
        buffer_load_dword {vr(junk)}, {vr(tmp + 4)}, s[56:59], s27 offen
        s_mov_b64 exec, -1
        ''')
    stamp()
    tab1 = sum(SLOT[e] << (4 * i) for i, e in enumerate(T1))
    tab2 = sum((SLOT[e] - 8) << (4 * i) for i, e in enumerate(T2))
    t4, t6 = tmp + 4, tmp + 6
    a(f'''
    v_and_b32 {vr(vI)}, 15, v0
    v_lshrrev_b32 {vr(vG)}, 4, {vr(vL)}
    s_mul_i32 s{sSTG}, s{sW}, {STG}
    s_mul_i32 s{sTB}, s{sW}, {TBS}
    s_mul_i32 s{sU}, s{sW}, {UCH}
    s_add_u32 s{sTB}, s{sTB}, {TB0}
    s_add_u32 s{sU}, s{sU}, {UB0}
    s_movk_i32 s{sT0}, {ROW}
    v_lshl_add_u32 {vr(aM)}, {vr(vG)}, 4, s{sSTG}
    v_mad_u32_u24 {vr(aB)}, {vr(vI)}, s{sT0}, {vr(aM)}
    v_lshlrev_b32 {vr(t4)}, 2, {vr(vI)}
    s_mov_b32 s24, {hex(tab1 & 0xffffffff)}
    s_mov_b32 s25, {hex(tab1 >> 32)}
    s_mov_b32 s26, {hex(tab2 & 0xffffffff)}
    s_mov_b32 s27, {hex(tab2 >> 32)}
    v_lshrrev_b64 {vr(t6, 2)}, {vr(t4)}, s[24:25]
    v_and_b32 {vr(t6)}, 15, {vr(t6)}
    v_mad_u32_u24 {vr(aT1)}, {vr(t6)}, s{sT0}, {vr(aM)}
    v_lshrrev_b64 {vr(t6, 2)}, {vr(t4)}, s[26:27]
    v_and_b32 {vr(t6)}, 15, {vr(t6)}
    v_mad_u32_u24 {vr(aT2)}, {vr(t6)}, s{sT0}, {vr(aM)}
    v_lshlrev_b32 {vr(uoff)}, 11, v0
    buffer_load_dwordx4 {vr(UA, 4)}, {vr(uoff)}, s[56:59], s{sUCOL} offen
    buffer_load_dwordx4 {vr(UA + 4, 4)}, {vr(uoff)}, s[56:59], s{sUCOL} offen offset:1024
    v_mov_b32 {vr(DV + 1)}, 0
    v_mov_b32 {vr(t6)}, 0x3c00
    s_mov_b32 m0, s{sU}
    ''')
    z = DV + 1
    for k in acc.values():
        for r in range(4):
            a(f'v_mov_b32 {vr(k + r)}, 0')
    a(f'''
    ds_write_addtid_b32 {vr(z)} offset:0
    ds_write_addtid_b32 {vr(z)} offset:256
    s_mov_b32 m0, s{sTB}
    v_min_u32 {vr(t4 + 1)}, 31, {vr(vL)}
    ds_write_addtid_b32 {vr(z)} offset:2112
    ds_write_addtid_b32 {vr(z)} offset:2144
    ''')
    for k, (sh, w) in enumerate(((4, 1), (8, 2), (8, 3), (8, 4))):
        m = ((1 << (2 * w + 1)) - 1) << (15 + sh - w + 1)
        t = tmp + 8 + k
        a(f'''
        s_mov_b32 s{sT1}, {hex(m)}
        v_bfe_u32 {vr(t)}, s{sT1}, {vr(t4 + 1)}, 2
        v_mul_u32_u24 {vr(t)}, 0x20001, {vr(t)}
        v_and_b32 {vr(t)}, 0x20002, {vr(t)}
        v_mul_u32_u24 {vr(t)}, 0x1fc0, {vr(t)}
        ''')
    a(f'''
    v_lshlrev_b32 {vr(t4 + 1)}, 5, {vr(vG)}
    v_sub_u32 {vr(pa0)}, {vr(t4)}, {vr(t4 + 1)}
    s_add_u32 s{sT1}, s{sTB}, 100
    v_add_u32 {vr(pa0)}, s{sT1}, {vr(pa0)}
    ''')
    for k in range(4):
        a(f'ds_write_addtid_b32 {vr(tmp + 8 + k)} offset:{256 * k}')
    a(f's_mov_b32 m0, s{sSTG}')
    for k in range(4):
        a(f'ds_read2_b32 {vr(BOX[k], 2)}, {vr(pa0)} offset0:{64 * k + 6} offset1:{64 * k + 4}')
        a(f'ds_read2_b32 {vr(BOX[k] + 2, 2)}, {vr(pa0)} offset0:{64 * k + 2} offset1:{64 * k}')
    a(f'''
    ds_write_addtid_b32 {vr(z)} offset:{SLOT['z'] * ROW}
    ds_write_addtid_b32 {vr(t6)} offset:{24 * ROW}
    v_add_u32 {vr(pa1)}, 0x400, {vr(pa0)}
    v_add_u32 {vr(pa2)}, 0x800, {vr(pa0)}
    v_lshlrev_b32 {vr(t4 + 1)}, 4, {vr(vG)}
    v_lshl_add_u32 {vr(ub)}, {vr(vI)}, 5, {vr(t4 + 1)}
    v_add_u32 {vr(ub)}, s{sU}, {vr(ub)}
    v_sub_u32 {vr(t6 + 1)}, {vr(t4)}, {vr(t4 + 1)}
    s_add_u32 s{sT0}, s{sTB}, {R3O - 12}
    s_add_u32 s{sT1}, s{sTB}, {R2O - 24}
    v_add_u32 {vr(r3a)}, s{sT0}, {vr(t6 + 1)}
    v_lshl_add_u32 {vr(r2a)}, {vr(t6 + 1)}, 1, s{sT1}
    v_lshl_add_u32 {vr(aR2)}, {vr(vG)}, 7, {vr(t4)}
    v_lshrrev_b32 {vr(aR3)}, 1, {vr(aR2)}
    s_add_u32 s{sT0}, s{sTB}, {R2O}
    v_add_u32 {vr(aR2)}, s{sT0}, {vr(aR2)}
    v_add_u32 {vr(aR3)}, s{sTB}, {vr(aR3)}
    v_and_b32 {vr(t4 + 1)}, 16, {vr(vL)}
    v_lshl_add_u32 {vr(aP)}, {vr(vI)}, 5, {vr(t4 + 1)}
    v_and_b32 {vr(t4 + 1)}, 32, {vr(vL)}
    v_lshl_add_u32 {vr(aP)}, {vr(t4 + 1)}, 5, {vr(aP)}
    v_add_u32 {vr(aP)}, s{sTB}, {vr(aP)}
    v_mul_u32_u24 {vr(yw)}, 144, {vr(vG)}
    v_lshl_add_u32 {vr(yw)}, {vr(vI)}, 3, {vr(yw)}
    v_add_u32 {vr(yw)}, s{sSTG}, {vr(yw)}
    v_lshrrev_b32 {vr(t4 + 1)}, 2, {vr(vI)}
    v_mul_u32_u24 {vr(yr)}, {STG}, {vr(t4 + 1)}
    v_and_b32 {vr(t4 + 1)}, 3, {vr(vL)}
    v_mul_u32_u24 {vr(t4 + 1)}, 144, {vr(t4 + 1)}
    v_and_b32 {vr(st)}, 0xff, v0
    v_lshrrev_b32 {vr(t6 + 1)}, 4, {vr(st)}
    v_lshlrev_b32 {vr(t6 + 1)}, 3, {vr(t6 + 1)}
    v_add3_u32 {vr(yr)}, {vr(yr)}, {vr(t4 + 1)}, {vr(t6 + 1)}
    v_lshlrev_b32 {vr(st)}, 11, {vr(st)}
    s_mov_b32 s60, s22
    s_mov_b32 s61, s23
    s_mov_b32 s62, 0x400000
    s_mov_b32 s63, 0x20000
    s_and_b32 s{sT0}, s2, 4
    s_lshl_b32 s{sT0}, s{sT0}, 8
    s_add_u32 s{sOCOL}, s{sUCOL}, s{sT0}
    s_add_u32 s{sU2}, s{sUCOL}, 0x100000
    s_mov_b32 s{sSEL0}, 0x05040100
    s_mov_b32 s{sSEL1}, 0x07060302
    s_mov_b32 s{sHI}, 0xffff0000
    s_lshl_b32 s{sM1}, s{sW}, 8
    s_add_u32 s{sM1}, s{sM1}, {UB0 + 512}
    s_add_u32 s{sM2}, s{sM1}, 2048
    s_mov_b32 s{sIT}, 0
    ''')
    chi = 47274 / 32768
    clo = (math.log2(math.e) - chi) * math.log(2)
    a(f'''
    s_mov_b32 s{sCHI}, {hex(f2u(chi))}
    s_mov_b32 s{sCLO}, {hex(f2u(clo))}
    s_cmp_lg_u32 s3, 0
    s_waitcnt lgkmcnt(0)
    ''')
    stamp()
    a(f's_waitcnt vmcnt({nvm_after_params})')
    stamp()
    a.hot = True
    wr, wi = tmp, tmp + 2
    q0, q1, q2, q3 = tmp + 4, tmp + 6, tmp + 8, tmp + 10
    mx, dt = tmp + 12, tmp + 13

    def unpack(dst, src):
        a(f'v_lshlrev_b32 {vr(dst)}, 16, {vr(src)}\nv_and_b32 {vr(dst + 1)}, s{sHI}, {vr(src)}')
    a('s_cbranch_scc1 L_prepB')
    a.cond_begin()
    unpack(q0, P1)
    a(f'v_pk_mul_f32 {vr(q1, 2)}, {vr(q0, 2)}, s[{sCHI}:{sCHI + 1}] op_sel_hi:[1,0]')
    a(f'v_pk_mul_f32 {vr(q0, 2)}, {vr(q0, 2)}, s[{sCLO}:{sCLO + 1}] op_sel_hi:[1,0]')
    a(f'v_exp_f32 {vr(q1)}, {vr(q1)}\nv_exp_f32 {vr(q1 + 1)}, {vr(q1 + 1)}')
    unpack(wr, P3)
    unpack(wi, P4)
    a(f'v_pk_fma_f32 {vr(q1, 2)}, {vr(q1, 2)}, {vr(q0, 2)}, {vr(q1, 2)}')
    a(f'v_cvt_pk_bf16_f32 {vr(P1)}, {vr(q1)}, {vr(q1 + 1)}')
    a('s_branch L_prepC')
    a.cond_end()
    a('L_prepB:')
    a.cond_begin()
    unpack(q0, P3)
    unpack(q1, P4)
    unpack(q2, P5)
    unpack(q3, P6)
    a(f'''
    v_pk_mul_f32 {vr(wr, 2)}, {vr(q1, 2)}, {vr(q3, 2)} neg_lo:[1,0] neg_hi:[1,0]
    v_pk_mul_f32 {vr(wi, 2)}, {vr(q1, 2)}, {vr(q2, 2)}
    v_pk_fma_f32 {vr(wr, 2)}, {vr(q0, 2)}, {vr(q2, 2)}, {vr(wr, 2)}
    v_pk_fma_f32 {vr(wi, 2)}, {vr(q0, 2)}, {vr(q3, 2)}, {vr(wi, 2)}
    ''')
    a.cond_end()
    a('.p2align 3')
    a('L_prepC:')
    dpp = [f'v_max_u32_dpp {vr(mx)}, {vr(mx)}, {vr(mx)} {m} bank_mask:0xf' for m in (
        'row_shr:1 row_mask:0xf', 'row_shr:2 row_mask:0xf', 'row_shr:4 row_mask:0xf', 'row_shr:8 row_mask:0xf',
        'row_bcast:15 row_mask:0xa', 'row_bcast:31 row_mask:0xc')]
    a(f'''
    v_max3_f32 {vr(mx)}, |{vr(wr)}|, |{vr(wr + 1)}|, |{vr(wi)}|
    v_max_f32_e64 {vr(mx)}, {vr(mx)}, |{vr(wi + 1)}|
    v_mul_f32 {vr(dt)}, s{sCHI}, {vr(LD)}
    v_mul_f32 {vr(LD)}, s{sCLO}, {vr(LD)}
    {dpp[0]}
    v_exp_f32 {vr(dt)}, {vr(dt)}
    v_lshlrev_b32 {vr(q0)}, 16, {vr(P1)}
    {dpp[1]}
    v_fma_f32 {vr(dt)}, {vr(dt)}, {vr(LD)}, {vr(dt)}
    v_cvt_pk_bf16_f32 {vr(dt)}, {vr(dt)}, {vr(dt)}
    {dpp[2]}
    v_and_b32 {vr(dt)}, s{sHI}, {vr(dt)}
    v_and_b32 {vr(q0 + 1)}, s{sHI}, {vr(P1)}
    {dpp[3]}
    v_mul_f32 {vr(q2)}, s{sCX}, {vr(dt)}
    v_mul_f32 {vr(q3)}, 0.15915494, {vr(dt)}
    {dpp[4]}
    v_lshlrev_b32 {vr(q1)}, 16, {vr(P2)}
    v_and_b32 {vr(q1 + 1)}, s{sHI}, {vr(P2)}
    {dpp[5]}
    v_pk_mul_f32 {vr(X, 2)}, {vr(q0, 2)}, {vr(q2, 2)} op_sel_hi:[1,0]
    v_readlane_b32 s{sT0}, {vr(mx)}, 63
    v_pk_mul_f32 {vr(Y, 2)}, {vr(q1, 2)}, {vr(q3, 2)} op_sel_hi:[1,0]
    s_lshr_b32 s{sT0}, s{sT0}, 23
    s_max_u32 s{sT0}, s{sT0}, 5
    s_sub_u32 s{sSC}, 258, s{sT0}
    s_lshl_b32 s{sSC}, s{sSC}, 23
    s_sub_u32 s{sINV}, s{sT0}, s{sEXA}
    s_lshl_b32 s{sINV}, s{sINV}, 23
    v_fma_mixlo_f16 {vr(Wp)}, {vr(wr)}, s{sSC}, 0
    v_fma_mixlo_f16 {vr(Wp + 1)}, {vr(wr + 1)}, s{sSC}, 0
    v_fma_mixhi_f16 {vr(Wp)}, -{vr(wi)}, s{sSC}, 0
    v_fma_mixhi_f16 {vr(Wp + 1)}, -{vr(wi + 1)}, s{sSC}, 0
    v_mul_f32 {vr(KS)}, s{sINV}, {vr(dt)}
    ''')
    stamp()
    a('.p2align 3')
    a('L_kg:')
    R, RT = tmp, tmp + 2
    tq = [tmp + 4, tmp + 5, tmp + 6, tmp + 7]
    seed = {p: P.alloc() for p in (1, 4, 8, 16, 32, 64, 128, 256, 512)}
    G = {0: Wp}
    E = {1: seed[8], 2: seed[16], 4: seed[32], 8: seed[64]}
    pend = []
    vt = [0]
    tqi = [0]

    def flush(force=False):
        if force or (vt[0] >= cfg.grp_time and len(pend) >= 2):
            n = len(pend) if force else min(len(pend), max(2, (vt[0] - 8) // 4 + (1 if len(pend) > 4 else 0)))
            for _ in range(n):
                a(pend.pop(0))
            vt[0] = 0

    def valu(t, c=4):
        a(t)
        vt[0] += c

    def wrow(reg, row):
        pend.append(f'ds_write_addtid_b32 {vr(reg)} offset:{row * ROW}')

    def cmul(d, x, y, conj):
        t = tq[tqi[0] % 4]
        tqi[0] += 1
        if conj:
            return [f'v_pk_mul_f16 {vr(t)}, {vr(x)}, {vr(y)} op_sel:[1,1] op_sel_hi:[1,0]',
                    f'v_pk_fma_f16 {vr(d)}, {vr(x)}, {vr(y)}, {vr(t)} op_sel:[0,0,0] op_sel_hi:[0,1,1] neg_hi:[1,0,0]']
        return [f'v_pk_mul_f16 {vr(t)}, {vr(x)}, {vr(y)} op_sel:[1,1] op_sel_hi:[1,0] neg_lo:[1,0]',
                f'v_pk_fma_f16 {vr(d)}, {vr(x)}, {vr(y)}, {vr(t)} op_sel:[0,0,0] op_sel_hi:[0,1,1]']

    def g(e, s, p):
        G[e] = P.alloc()
        for t in cmul(G[e], G[s], seed[p], True):
            valu(t)
        wrow(G[e], SLOT[e])
        flush()

    def eprod(i):
        hb = 1 << (i.bit_length() - 1)
        E[i] = P.alloc()
        for t in cmul(E[i], E[i - hb], E[hb], False):
            valu(t)
        wrow(E[i], 24 + i)
        flush()

    def sq(p):
        valu(f'v_pk_mul_f32 {vr(RT, 2)}, {vr(R, 2)}, {vr(R, 2)} op_sel:[1,1] op_sel_hi:[1,0] neg_lo:[1,0]')
        valu(f'v_pk_fma_f32 {vr(R, 2)}, {vr(R, 2)}, {vr(R, 2)}, {vr(RT, 2)} op_sel:[0,0,0] op_sel_hi:[0,1,1]')
        if p in seed:
            valu(f'v_cvt_pk_f16_f32 {vr(seed[p])}, {vr(R)}, {vr(R + 1)}')
            if p in (8, 16, 32, 64):
                wrow(seed[p], 24 + p // 8)
            if p == 128:
                wrow(seed[p], SLOT['M'])
        flush()

    def rd(F, addr, row0):
        for ks in range(4):
            pend.append(f'ds_read_b128 {vr(F[ks], 4)}, {vr(addr)} offset:{row0 * ROW + 64 * ks}')

    wrow(G[0], SLOT[0])
    valu(f'v_cos_f32 {vr(R)}, {vr(Y)}', 8)
    valu(f'v_sin_f32 {vr(R + 1)}, {vr(Y)}', 8)
    valu(f'v_exp_f32_e64 {vr(RT)}, {vr(X)}', 8)
    flush(True)
    valu(f'v_pk_mul_f32 {vr(R, 2)}, {vr(R, 2)}, {vr(RT, 2)} op_sel_hi:[1,0]')
    valu(f'v_cvt_pk_f16_f32 {vr(seed[1])}, {vr(R)}, {vr(R + 1)}')
    g(1, 0, 1); sq(2); g(2, 1, 1); sq(4); g(3, 2, 1); sq(8); g(4, 0, 4); g(5, 1, 4); sq(16)
    g(6, 2, 4); g(7, 3, 4); sq(32); eprod(3); g(8, 0, 8); sq(64); eprod(5); eprod(6); eprod(7); sq(128)
    rd(FM, aM, SLOT['M'])
    eprod(9); eprod(10); sq(256); eprod(11); eprod(12); eprod(13); sq(512); eprod(14); eprod(15)
    rd(FB, aB, 24)
    g(256, 0, 256); g(258, 2, 256); g(260, 4, 256); g(262, 6, 256); g(264, 8, 256)
    rd(FT1, aT1, 0)
    g(516, 4, 512); g(520, 8, 512); g(772, 260, 512); g(776, 264, 512)
    g(1032, 520, 512); g(1288, 776, 512); g(1544, 1032, 512); g(1800, 1288, 512)
    rd(FT2, aT2, 8)
    flush(True)
    prods = []
    for ks in range(4):
        for r in range(4):
            prods += cmul(FM[ks] + r, FB[ks] + r, FM[ks] + r, False)
    order = [(1, 0, 0, 2), (1, 0, 1, 2), (1, 0, 2, 2), (1, 0, 3, 2), (2, 0, 0, 2), (1, 1, 0, 2), (2, 1, 0, 2), (2, 0, 1, 2),
             (2, 0, 2, 2), (1, 1, 1, 2), (2, 1, 1, 2), (2, 0, 3, 4), (1, 1, 2, 3), (2, 1, 2, 3), (1, 1, 3, 0), (2, 1, 3, 0)]
    a.hot = False
    ids = {tuple(sorted(d))[0][1]: oid for oid, d in a.dsq if d}
    for n, (t, j, ks, npr) in enumerate(order):
        if n == 0:
            a.wait_ds(ids[FT1[3]])
        if n == 4:
            a.wait_ds(ids[FT2[1]])
        if n == 8:
            a.wait_ds(ids[FT2[3]])
        if n == 14:
            a(f'v_mov_b32 {vr(Y)}, {vr(Y + 1)}\nv_mov_b32 {vr(X)}, {vr(X + 1)}')
        FA = (FT1 if t == 1 else FT2)[ks]
        FBx = (FB if j == 0 else FM)[ks]
        a(f'v_mfma_f32_16x16x32_f16 {vr(acc[t, j], 4)}, {vr(FA, 4)}, {vr(FBx, 4)}, {vr(acc[t, j], 4)}')
        for _ in range(npr):
            a(prods.pop(0))
        if n == 14:
            a(f'v_mov_b32 {vr(Wp)}, {vr(Wp + 1)}\ns_cmp_lg_u32 s{sIT}, 0')
    assert not prods
    a(f'''
    s_cbranch_scc1 L_kg_done
    s_mov_b32 s{sIT}, 1
    s_bitcmp1_b32 s2, 3
    s_cbranch_scc1 L_ld2
    s_cmp_ge_u32 s{sW}, 2
    s_cbranch_scc1 L_kg
L_ld2:
    buffer_load_dwordx4 {vr(UBr, 4)}, {vr(uoff)}, s[56:59], s{sU2} offen
    buffer_load_dwordx4 {vr(UBr + 4, 4)}, {vr(uoff)}, s[56:59], s{sU2} offen offset:1024
    ''')
    a.cond_begin()
    a('s_branch L_kg')
    a.cond_end()
    a('.p2align 3')
    a('L_kg_done:')
    a.hot = True
    stamp()

    def stage_ops(U, t0):
        v, d = [], []
        for ch in range(8):
            k = ch // 2
            v.append(f'v_perm_b32 {vr(t0 + ch)}, {vr(U + 4 + k)}, {vr(U + k)}, s{sSEL1 if ch & 1 else sSEL0}')
            d.append(f'ds_write_addtid_b32 {vr(t0 + ch)} offset:{ch * UCH}')
        return v, d
    a(f'''
    s_bitcmp1_b32 s2, 3
    s_waitcnt vmcnt(2)
    s_cbranch_scc1 L_st1
    s_cmp_ge_u32 s{sW}, 2
    s_waitcnt vmcnt(0)
    s_cbranch_scc1 L_st1
    ''')
    a.cond_begin()
    v, d = stage_ops(UBr, tmp + 8)
    a(f's_mov_b32 m0, s{sM2}')
    a('\n'.join(v + d))
    a.cond_end()
    a('.p2align 3')
    a('L_st1:')
    v, d = stage_ops(UA, tmp)
    a(f's_mov_b32 m0, s{sM1}')
    a('\n'.join(v[:4] + d[:2] + v[4:] + d[2:5]))
    PK = [FT1[0], FT1[1]]
    K2, K3 = FT1[2], FT1[2] + 2
    first = True
    stg_last = None
    for key in ((1, 0), (2, 0), (1, 1), (2, 1)):
        for h in range(2):
            r = acc[key] + 2 * h
            if first:
                a(f'v_pk_fma_f32 {vr(r, 2)}, {vr(r, 2)}, {vr(KS, 2)}, {vr(DV, 2)} op_sel_hi:[1,0,1]')
                first = False
            else:
                a(f'v_pk_mul_f32 {vr(r, 2)}, {vr(r, 2)}, {vr(KS, 2)} op_sel_hi:[1,0]')
        if key == (2, 0):
            stg_last = a('\n'.join(d[5:]))
    for j in range(2):
        v5 = [acc[1, j] + r for r in range(4)] + [acc[2, j]]
        for r in range(4):
            a(f'v_cvt_pk_bf16_f32 {vr(PK[j] + r)}, {vr(v5[r + 1])}, {vr(v5[r])}')
        if j == 0:
            a(f'ds_write_b128 {vr(aP)}, {vr(PK[0], 4)} offset:64')
    a(f'''
    v_cvt_pk_bf16_f32 {vr(K2)}, {vr(acc[2, 0] + 1)}, {vr(acc[2, 0] + 2)}
    v_cvt_pk_bf16_f32 {vr(K2 + 1)}, {vr(acc[2, 1] + 1)}, {vr(acc[2, 1] + 2)}
    v_cvt_pk_bf16_f32 {vr(K3)}, {vr(acc[2, 0] + 3)}, {vr(acc[2, 1] + 3)}
    ds_write_b128 {vr(aP)}, {vr(PK[1], 4)} offset:{64 + 512}
    ds_write2_b32 {vr(aR2)}, {vr(K2)}, {vr(K2 + 1)} offset0:0 offset1:16
    ds_write_b16 {vr(aR3)}, {vr(K3)} offset:{R3O}
    ds_write_b16_d16_hi {vr(aR3)}, {vr(K3)} offset:{R3O + 32}
    s_mov_b64 exec, 1
    ds_write_b16_d16_hi {vr(aP)}, {vr(PK[0])} offset:60
    s_bfm_b64 exec, 1, 63
    ds_write2_b32 {vr(aP)}, {vr(PK[1] + 3)}, {vr(PK[1] + 3)} offset0:148 offset1:149
    ds_write_b16 {vr(aP)}, {vr(PK[1] + 3)} offset:602
    s_bfm_b64 exec, 1, 31
    ds_write_b16_d16_hi {vr(aP)}, {vr(K2 + 1)} offset:1760
    ds_write_b16_d16_hi {vr(aP)}, {vr(K2 + 1)} offset:1764
    ds_write_b16_d16_hi {vr(aP)}, {vr(K2 + 1)} offset:1766
    ds_write_b16_d16_hi {vr(aP)}, {vr(K2 + 1)} offset:1770
    s_mov_b64 exec, -1
    ''')
    a.wait_ds(stg_last)
    a('s_bitcmp1_b32 s2, 3')
    a.hot = False
    stamp()
    a('s_barrier')
    stamp()
    a('s_cbranch_scc1 L_hi')
    dsq0 = list(a.dsq)
    ts0 = nts[0]
    hiwater = [P.hi]

    def conv(role):
        a.dsq = list(dsq0)
        nts[0] = ts0
        Q = convP.copy()
        Q.release(UA, 8)
        if role == 'lo':
            Q.release(UBr, 8)
        tiles = [0, 1, 2, 3, 4] if role == 'lo' else [5, 6, 7]
        slots = []

        def W16(tau): return ('U', 512 * tau - 32)
        def W24(tau): return ('U', 512 * tau - 48)

        def box2(tau):
            for ph, (w, b) in enumerate(((W16, 0), (W16, 1), (W24, 0), (W24, 1))):
                slots.append(('mf', ('D', tau, ph), w(tau), ('BOX', b)))

        def box3(tau):
            slots.append(('mf', ('D', tau, 4), W16(tau), ('BOX', 2)))
            slots.append(('mf', ('D', tau, 5), W24(tau), ('BOX', 3)))

        def far2(tau):
            for h in range(2):
                for mu in (2, 3, 4):
                    if tau + mu in tiles:
                        slots.append(('mf', ('Y', tau + mu), ('V', tau, h), ('R2', mu, h)))

        def far3(tau):
            for mu in (4, 5, 6, 7):
                if tau + mu in tiles:
                    slots.append(('mf', ('Y', tau + mu), ('V', tau, 2), ('R3', mu)))

        def spec(t):
            slots.append(('mf', ('Y', t), ('A', 17), W16(t - 4)))

        def near(t, ms=None):
            for m in (ms if ms is not None else range(min(16, 8 * t + 7), -1, -1)):
                slots.append(('mf', ('Y', t), ('A', m), ('U', 64 * (8 * t - m) - 32)))
        if role == 'lo':
            box2(0); box3(0); box2(1); box2(2)
            far2(0); far3(0); far2(1); far2(2); spec(4)
            for t in tiles:
                near(t)
                slots.append(('fin', t))
        else:
            box2(1); box3(1); box3(0); box2(2); box3(2)
            far2(1); far3(1); far3(0); spec(5)
            box2(3); box3(3)
            far2(2); far3(2); spec(6)
            slots.append(('stage2',))
            far2(3); far3(3); spec(7); near(5, [16])
            slots.append(('bar2',))
            near(5, range(15, 7, -1)); box2(4); near(5, range(7, -1, -1))
            slots.append(('fin', 5))
            far2(4); box2(5); near(6)
            slots.append(('fin', 6))
            far2(5); near(7)
            slots.append(('fin', 7))
        uses = {}
        for s, sl in enumerate(slots):
            if sl[0] == 'mf':
                new = list(sl)
                for pos in (2, 3):
                    k = sl[pos]
                    if k[0] == 'U':
                        gen_, last = uses.get(k, (0, s))
                        if s - last > 30:
                            gen_ += 1
                        uses[k] = (gen_, s)
                        new[pos] = k + (gen_,)
                slots[s] = tuple(new)
        first, last = {}, {}
        for s, sl in enumerate(slots):
            if sl[0] == 'mf':
                for k in sl[1:]:
                    first.setdefault(k, s)
                    last[k] = s
        bar2 = [s for s, sl in enumerate(slots) if sl[0] == 'bar2']
        bar2 = bar2[0] if bar2 else -1
        reg = {('BOX', k): BOX[k] for k in range(4)}
        loads = []
        for k in sorted(first, key=lambda k: first[k]):
            if k[0] in ('A', 'U', 'R2', 'R3'):
                loads.append([k, 0])

        def load_ins(k):
            r = reg[k]
            if k[0] == 'U':
                return [(f'ds_read_b128 {vr(r, 4)}, {vr(ub)} offset:{512 + k[1]}', 4)]
            if k[0] == 'A':
                off = 546 if k[1] == 17 else 32 * k[1]
                base = (pa0, pa1, pa2)[off // 256]
                o = off % 256
                return [(f'ds_read2_b32 {vr(r, 2)}, {vr(base)} offset0:{o + 6} offset1:{o + 4}', 4),
                        (f'ds_read2_b32 {vr(r + 2, 2)}, {vr(base)} offset0:{o + 2} offset1:{o}', 4)]
            if k[0] == 'R2':
                o = 8 * (16 * (k[1] - 2) + 3 - 2 * k[2])
                return [(f'ds_read_b64 {vr(r, 2)}, {vr(r2a)} offset:{o}', 2),
                        (f'ds_read_b64 {vr(r + 2, 2)}, {vr(r2a)} offset:{o - 8}', 2)]
            o = 16 * (k[1] - 4)
            return [(f'ds_read2_b32 {vr(r, 2)}, {vr(r3a)} offset0:{o + 3} offset1:{o + 2}', 4),
                    (f'ds_read2_b32 {vr(r + 2, 2)}, {vr(r3a)} offset0:{o + 1} offset1:{o}', 4)]

        def needs_stage2(k):
            return role == 'hi' and k[0] == 'U' and k[1] // 2 + 271 >= 1024

        def issue(item, must=False):
            k = item[0]
            if k not in reg:
                if not must and len(Q.free) < 28:
                    return None
                r = Q.alloc(4)
                assert r is not None, 'out of registers'
                reg[k] = r
            ins = load_ins(k)
            a(ins[item[1]][0])
            c = ins[item[1]][1]
            item[1] += 1
            if item[1] == len(ins):
                loads.remove(item)
            return c

        def do_loads(s, budget, nmax):
            spent, n = 0, 0
            for item in list(loads):
                k = item[0]
                if first[k] - s > cfg.look:
                    break
                if needs_stage2(k) and s < bar2:
                    continue
                while item in loads and spent < budget and n < nmax:
                    c = issue(item)
                    if c is None:
                        return
                    spent += c
                    n += 1
            if n == 0:
                for item in loads:
                    if item[0][0] != 'U':
                        issue(item)
                        break

        vq = []
        dq = []
        evq = []
        ytmp = Q.alloc(2)
        sdat = Q.alloc(4)

        def pop_v():
            _, text, key, frees, cb = vq.pop(0)
            a(text)
            for r, n in frees:
                Q.release(r, n)
            if cb:
                cb()

        def make_v(tau, which, s):
            if which == 2:
                r = reg[('V', tau, 2)] = Q.alloc(4)
                d0, d1 = reg[('D', tau, 4)], reg[('D', tau, 5)]
                for i in range(4):
                    vq.append([len(a.ins) + 8, f'v_cvt_pk_bf16_f32 {vr(r + i)}, {vr(d0 + i)}, {vr(d1 + i)}', ('V', tau, 2), [(d0, 4), (d1, 4)] if i == 3 else [], None])
            else:
                d = [reg[('D', tau, p)] for p in range(4)]
                for h in range(2):
                    r = reg[('V', tau, h)] = Q.alloc(4)
                    for i in range(4):
                        kk = 2 * h + i // 2
                        p = 2 * (i % 2)
                        vq.append([len(a.ins) + 8, f'v_cvt_pk_bf16_f32 {vr(r + i)}, {vr(d[p] + kk)}, {vr(d[p + 1] + kk)}', ('V', tau, h),
                                   [(x, 4) for x in d] if (h, i) == (1, 3) else [], None])

        def store_block(t):
            k = tiles.index(t)
            lab = f'L_ns_{role}{t}'
            a(f's_bitcmp1_b32 s{sW}, 2')
            a('s_barrier')
            a(f's_cbranch_scc{1 if k % 2 == 0 else 0} {lab}')
            a.cond_begin()
            a(f'''
            ds_read_b64_tr_b16 {vr(sdat, 2)}, {vr(yr)} offset:{YT * k}
            ds_read_b64_tr_b16 {vr(sdat + 2, 2)}, {vr(yr)} offset:{YT * k + 4 * STG}
            s_add_u32 s{sT0}, s{sOCOL}, {t * 256 * 2048}
            s_waitcnt lgkmcnt(0)
            buffer_store_dwordx4 {vr(sdat, 4)}, {vr(st)}, s[60:63], s{sT0} offen
            ''')
            a.cond_end()
            a(f'{lab}:')
            stamp()

        def service(s, final=False):
            nd = 0
            while dq and (final or (dq[0][0] <= s and nd < 2)):
                _, text, cb = dq.pop(0)
                oid = a(text)
                nd += 1
                if cb:
                    cb(oid)
            if not final:
                do_loads(s, 8, 2 - nd if nd else 2)
            nv = 0
            while vq and (final or (vq[0][0] <= len(a.ins) and nv < 2)):
                pop_v()
                nv += 1
            if final and dq:
                return service(s, True)
            while evq and (final or evq[0][0] <= s):
                _, oid, t = evq.pop(0)
                a.wait_ds(oid)
                store_block(t)

        started = set()
        cur = [0]
        stage_last = [None]
        do_loads(0, 64, 8)
        for s, sl in enumerate(slots):
            cur[0] = s
            if sl[0] == 'mf':
                _, dk, ak, bk = sl
                for k in (ak, bk):
                    for item in [it for it in loads if it[0] == k]:
                        while item in loads:
                            issue(item, True)
                    while any(v[2] == k for v in vq):
                        pop_v()
                if dk not in reg:
                    reg[dk] = Q.alloc(4)
                    assert reg[dk] is not None
                c = vr(reg[dk], 4) if dk in started else '0'
                started.add(dk)
                a(f'v_mfma_f32_16x16x32_bf16 {vr(reg[dk], 4)}, {vr(reg[ak], 4)}, {vr(reg[bk], 4)}, {c}')
                for k in (ak, bk):
                    if last[k] == s:
                        Q.release(reg[k], 4)
                if dk[0] == 'D' and dk[2] == 3:
                    make_v(dk[1], 0, s)
                if dk[0] == 'D' and dk[2] == 5:
                    make_v(dk[1], 2, s)
                service(s)
            elif sl[0] == 'fin':
                t = sl[1]
                y = reg[('Y', t)]
                k = tiles.index(t)

                def after(t=t, k=k, s=s):
                    dq.append([0, f'ds_write_b64 {vr(yw)}, {vr(ytmp, 2)} offset:{YT * k}',
                               lambda oid: evq.append([cur[0] + 4, oid, t])])
                vq.append([len(a.ins) + 8, f'v_cvt_pk_bf16_f32 {vr(ytmp)}, {vr(y)}, {vr(y + 1)}', None, [], None])
                vq.append([len(a.ins) + 8, f'v_cvt_pk_bf16_f32 {vr(ytmp + 1)}, {vr(y + 2)}, {vr(y + 3)}', None, [(y, 4)], after])
            elif sl[0] == 'stage2':
                t0 = Q.alloc(8)
                v, d = stage_ops(UBr, t0)
                stamp()
                a(f's_waitcnt vmcnt(0)\ns_mov_b32 m0, s{sM2}')
                stamp()
                newv = []
                for i in range(8):
                    def after(i=i):
                        def cb(oid):
                            stage_last[0] = oid
                            Q.release(t0 + i, 1)
                        dq.append([0, d[i], cb])
                    newv.append([0, v[i], 'stg', [(UBr, 8)] if i == 7 else [], after])
                vq[0:0] = newv
            elif sl[0] == 'bar2':
                while any(v[2] == 'stg' for v in vq):
                    pop_v()
                while dq:
                    _, text, cb = dq.pop(0)
                    cb(a(text))
                a.wait_ds(stage_last[0])
                a('s_barrier')
                stamp()
                do_loads(s, 64, 6)
        service(len(slots), True)
        hiwater.append(Q.hi)
        finish()

    def finish():
        if cfg.rt:
            lab = f'L_spin{len(hiwater)}'
            a(f'''
            s_waitcnt vmcnt(0)
            s_memrealtime s[24:25]
            s_load_dwordx2 s[28:29], s[0:1], 136
            s_waitcnt lgkmcnt(0)
            ''')
            if cfg.rt >= 2:
                a(f'''
                s_not_b32 s{sT0}, s98
                v_mov_b32 v2, 0
                v_mov_b32 v3, s{sT0}
                s_mov_b64 exec, 1
                global_atomic_umax v2, v3, s[28:29] sc1
                s_waitcnt vmcnt(0)
{lab}a:
                s_sleep 8
                s_memrealtime s[26:27]
                s_waitcnt lgkmcnt(0)
                s_sub_u32 s26, s26, s24
                s_cmp_lt_u32 s26, 10000
                s_cbranch_scc1 {lab}a
                global_load_dword v3, v2, s[28:29] sc0 sc1
                s_waitcnt vmcnt(0)
                v_readfirstlane_b32 s97, v3
                s_nop 3
                s_not_b32 s97, s97
                ''')
            src = {1: ('s24', 's98'), 2: ('s24', 's97'), 3: ('s98', 's97')}[cfg.rt]
            a(f'''
            s_sub_u32 s{sT0}, {src[0]}, {src[1]}
            s_mul_i32 s{sT0}, s{sT0}, 100
            s_add_u32 s{sT0}, s{sT0}, 10000
{lab}:
            s_sleep 8
            s_memrealtime s[26:27]
            s_waitcnt lgkmcnt(0)
            s_sub_u32 s26, s26, s24
            s_cmp_lt_u32 s26, s{sT0}
            s_cbranch_scc1 {lab}
            ''')
        if cfg.amp >= 0:
            lab = f'L_spin{len(hiwater)}'
            a('s_waitcnt vmcnt(0)')
            stamp()
            k = min(cfg.amp, nts[0] - 1)
            if cfg.ampw >= 0:
                a(f's_cmp_lg_u32 s2, {cfg.ampw}\ns_cbranch_scc1 L_end')
            a(f'''
            s_memrealtime s[24:25]
            s_waitcnt lgkmcnt(0)
            s_sub_u32 s{sT0}, s{64 + 2 * k}, s64
            s_mul_i32 s{sT0}, s{sT0}, 10
{lab}:
            s_sleep 8
            s_memrealtime s[26:27]
            s_waitcnt lgkmcnt(0)
            s_sub_u32 s26, s26, s24
            s_cmp_lt_u32 s26, s{sT0}
            s_cbranch_scc1 {lab}
            ''')
        if cfg.ts or cfg.dump:
            a('s_waitcnt vmcnt(0)')
            stamp()
            a(f'''
            s_load_dwordx2 s[24:25], s[0:1], 144
            s_waitcnt lgkmcnt(0)
            s_mov_b32 s26, 0x10000000
            s_mov_b32 s27, 0x20000
            ''')
        if cfg.ts:
            a(f's_lshl_b32 s{sT0}, s2, 3\ns_add_u32 s{sT0}, s{sT0}, s{sW}\ns_lshl_b32 s{sT0}, s{sT0}, 7\nv_mov_b32 v2, s{sT0}')
            for k in range(nts[0]):
                a(f's_sub_u32 s{sT1}, s{64 + 2 * k}, s64\nv_mov_b32 v3, s{sT1}\nbuffer_store_dword v3, v2, s[24:27], 0 offen offset:{4 * k}')
        if cfg.dump:
            lab = f'L_dump{len(hiwater)}'
            a(f'''
            s_barrier
            v_mbcnt_lo_u32_b32 v2, -1, 0
            v_mbcnt_hi_u32_b32 v2, -1, v2
            s_lshl_b32 s{sT0}, s{sW}, 6
            v_add_u32 v2, s{sT0}, v2
            v_lshlrev_b32 v2, 2, v2
            s_mul_i32 s{sT0}, s2, 163840
            s_add_u32 s{sT0}, s{sT0}, 0x100000
            s_mov_b32 s{sT1}, 0
{lab}:
            ds_read_b32 v3, v2
            s_waitcnt lgkmcnt(0)
            buffer_store_dword v3, v2, s[24:27], s{sT0} offen
            v_add_u32 v2, 2048, v2
            s_add_u32 s{sT1}, s{sT1}, 1
            s_cmp_lt_u32 s{sT1}, {(LDS + 2047) // 2048}
            s_cbranch_scc1 {lab}
            ''')
        a('s_endpgm')

    conv('lo')
    a('.p2align 3')
    a('L_hi:')
    conv('hi')
    a('L_end:\ns_endpgm')
    a.hazards()
    a.align8()
    size = a.measure()
    nv = max(hiwater)
    head = f'; @launch grid=(256,1,1) block=(512,1,1) lds={LDS}\n'
    if cfg.twice:
        head = f'; @launch kernel={NAME}_kernel grid=(256,1,1) block=(512,1,1) lds={LDS}\n' * cfg.twice
    head += f'''.amdgcn_target "amdgcn-amd-amdhsa--gfx950"
.text
.globl {NAME}_kernel
.p2align 8
.type {NAME}_kernel,@function
{NAME}_kernel:
'''
    pad = ''
    if size < 8192 + 256:
        pad = ''.join('    s_endpgm\n' for _ in range((8192 + 256 - size) // 4))
    tail = f'''.section .rodata,"a"
.p2align 6
.amdhsa_kernel {NAME}_kernel
  .amdhsa_next_free_vgpr 256
  .amdhsa_next_free_sgpr 102
  .amdhsa_accum_offset 256
  .amdhsa_group_segment_fixed_size 0
  .amdhsa_kernarg_size 152
  .amdhsa_user_sgpr_count 2
  .amdhsa_user_sgpr_kernarg_segment_ptr 1
  .amdhsa_system_sgpr_workgroup_id_x 1
.end_amdhsa_kernel
'''
    print(f'code size {size} B, vgpr highwater {hiwater}, stamps {nts[0]}, LDS {LDS}', file=sys.stderr)
    return head + a.text() + pad + tail


if __name__ == '__main__':
    cfg = Cfg()
    out = sys.argv[1]
    for kv in sys.argv[2:]:
        k, v = kv.split('=')
        setattr(cfg, k, type(getattr(cfg, k))(int(v)))
    open(out, 'w').write(gen(cfg))
```

```python
import sys
sys.path.insert(0, 'work')
import gen_naive as gn
NAME = gn.NAME
def HEAD(rt): return ("    s_memrealtime s[12:13]\n" if rt else "    s_memtime s[12:13]\n") + """
    s_cmp_ge_u32 s2, 256
    s_cbranch_scc1 L_pr_end
    s_and_b32 s3, s2, 4
    s_mul_i32 s3, s3, 14
    s_load_dwordx2 s[8:9], s[0:1], s3
    s_load_dwordx2 s[16:17], s[0:1], 144
    v_readfirstlane_b32 s20, v0
    v_and_b32 v51, 63, v0
    s_mov_b32 s10, 0x200000
    s_mov_b32 s11, 0x20000
    s_mov_b32 s18, 0x400000
    s_mov_b32 s19, 0x20000
    s_lshr_b32 s20, s20, 6
    s_and_b32 s21, s2, 7
    s_lshr_b32 s22, s2, 3
    s_lshl_b32 s47, s21, 8
    s_and_b32 s49, s47, 1023         ; xcd col base in input
"""
def PF(nw):
    per = 128 // nw
    return f"""
    s_lshl_b32 s50, s22, 10
    s_add_u32 s50, s50, s49
    s_mul_i32 s61, s20, {per//2*32*1024}
    s_add_u32 s50, s50, s61
    v_lshrrev_b32 v5, 1, v51
    v_lshlrev_b32 v5, 15, v5
    v_and_b32 v4, 1, v51
    v_lshl_add_u32 v5, v4, 7, v5
    s_bfm_b64 s[52:53], {per}, 0
    s_waitcnt lgkmcnt(0)
    s_mov_b64 exec, s[52:53]
    buffer_load_dword v9, v5, s[8:11], s50 offen
    s_mov_b64 exec, -1
    s_barrier
"""
def A_IO(inter):
    s = "    s_lshl_b32 s45, s22, 3\n    s_add_u32 s23, s47, s45\n    s_and_b32 s24, s23, 1023\n    v_lshlrev_b32 v1, 10, v0\n    v_lshlrev_b32 v2, 11, v0\n"
    ld = lambda i: f"    s_add_u32 s44, s24, {i*1024*256}\n    buffer_load_dwordx2 v[{10+2*i}:{11+2*i}], v1, s[8:11], s44 offen\n"
    st = lambda i: f"    s_add_u32 s44, s23, {i*2048*256}\n    buffer_store_dwordx2 v[{10+2*i}:{11+2*i}], v2, s[16:19], s44 offen\n"
    if inter == 0:
        s += "".join(ld(i) for i in range(8)) + "    s_waitcnt vmcnt(0)\n" + "".join(st(i) for i in range(8))
    elif inter == 2:
        s += "".join(ld(i) for i in range(8))
    return s + "    s_waitcnt vmcnt(0)\n"
def F_IO(stores):
    s = """    s_and_b32 s51, s22, 1
    s_lshr_b32 s45, s22, 1
    s_lshl_b32 s45, s45, 4
    s_add_u32 s23, s47, s45
    s_and_b32 s24, s23, 1023
    v_lshlrev_b32 v1, 11, v0
    buffer_load_dwordx4 v[12:15], v1, s[8:11], s24 offen
    buffer_load_dwordx4 v[16:19], v1, s[8:11], s24 offen offset:1024
    s_barrier
    s_add_u32 s44, s24, 0x100000
    s_cmp_lt_u32 s20, 2
    s_cselect_b32 s62, 1, s51
    s_cmp_eq_u32 s62, 0
    s_cbranch_scc1 L_no2
    buffer_load_dwordx4 v[20:23], v1, s[8:11], s44 offen
    buffer_load_dwordx4 v[24:27], v1, s[8:11], s44 offen offset:1024
L_no2:
    s_waitcnt vmcnt(0)
"""
    if stores:
        s += f"""    s_barrier
    s_mul_i32 s44, s51, {1280*2048}
    s_add_u32 s44, s44, s23
    buffer_store_dwordx4 v[12:15], v1, s[16:19], s44 offen
    s_add_u32 s44, s44, 0x100000
    s_cmp_eq_u32 s51, 1
    s_cbranch_scc1 L_h
    buffer_store_dwordx4 v[12:15], v1, s[16:19], s44 offen
    s_add_u32 s44, s44, 0x100000
L_h:
    s_cmp_ge_u32 s20, 4
    s_cbranch_scc1 L_h2
    buffer_store_dwordx4 v[12:15], v1, s[16:19], s44 offen
L_h2:
    s_waitcnt vmcnt(0)
"""
    return s
def STAMP(rt):
    return ("    s_memrealtime s[14:15]\n" if rt else "    s_memtime s[14:15]\n") + f"""
    s_waitcnt lgkmcnt(0)
    s_sub_u32 s14, s14, s12
    s_min_u32 s14, s14, {3000 if rt else 30000}
    s_mul_i32 s14, s14, {100 if rt else 10}
    s_memrealtime s[26:27]
    s_waitcnt lgkmcnt(0)
L_spin:
    s_sleep 8
    s_memrealtime s[28:29]
    s_waitcnt lgkmcnt(0)
    s_sub_u32 s28, s28, s26
    s_cmp_lt_u32 s28, s14
    s_cbranch_scc1 L_spin
L_pr_end:
"""
main = open('v1.s').read()
def write(path, body, blk):
    s = f"; @launch kernel=probe_kernel grid=(256,1,1) block=({blk},1,1) lds=0\n"
    s += f"; @launch kernel={NAME}_kernel grid=(256,1,1) block=(512,1,1) lds=154880\n"
    s += main[main.index('.amdgcn_target'):] + ".text\n"
    s += gn.kern("probe_kernel", body)
    open(path, 'w').write(s)
if __name__ == '__main__':
    write('k/p2_a_rt.s', HEAD(1) + PF(4) + A_IO(0) + STAMP(1), 256)
    write('k/p2_a_cy.s', HEAD(0) + PF(4) + A_IO(0) + STAMP(0), 256)
    write('k/p2_ald_rt.s', HEAD(1) + PF(4) + A_IO(2) + STAMP(1), 256)
    write('k/p2_f_rt.s', HEAD(1) + PF(8) + F_IO(1) + STAMP(1), 512)
    write('k/p2_fld_rt.s', HEAD(1) + PF(8) + F_IO(0) + STAMP(1), 512)
    write('k/p2_pf_rt.s', HEAD(1) + PF(8) + "    s_waitcnt vmcnt(0)\n" + STAMP(1), 512)
```

```python
import sys, struct, math
sys.path.insert(0, 'work')
from asmlib import *

NAME = "concat_heads__ssm_conv_s4d__ssm_conv_s4__prompt"


def f2u(x):
    return struct.unpack('<I', struct.pack('<f', x))[0]


ROW = 288
UCH = 4608
STG0 = 8 * UCH
STG = 11584
LDS = STG0 + 8 * STG
CT = 1600
R2O, R3O, YO, YT = 6336, 6720, 6976, 640

T1 = [0, 1, 2, 3, 4, 5, 6, 7, 256, 256, 258, 260, 260, 260, 262, 264]
T2 = [4, 516, 520, 1032, 8, 772, 776, 1288, 260, 'z', 'z', 1544, 264, 264, 264, 1800]
SLOT = {0: 4, 1: 0, 2: 6, 3: 1, 4: 10, 5: 8, 6: 12, 7: 7, 256: 14, 258: 3, 260: 13, 262: 2, 264: 15, 516: 11, 520: 9,
        1032: 22, 8: 16, 776: 23, 1288: 19, 1544: 17, 1800: 21, 'z': 20, 772: 18, 'M': 5}
BOXES = ((4, 1, 0), (8, 2, 26), (8, 3, 53), (8, 4, 81))


class Cfg:
    ts = False
    amp = -1
    grp = 16
    look = 10
    bg = 2
    bard = 4
    lo_order = 1
    wq = 2
    prio = 0
    s1 = 0
    mid = 0
    pfw = 1
    vmul = 0
    kbar = 0
    hi_order = 0
    sched = 0
    vmax = 2
    cprio = 0
    rsv = 24
    burst = 6
    rts = False


def gen(cfg):
    a = Asm()
    P = Pool(1, 256)
    nts = [0]

    def stamp():
        if cfg.ts or cfg.amp >= 0:
            k = nts[0]
            a(f's_mem{"real" if cfg.rts else ""}time s[{64 + 2 * k}:{65 + 2 * k}]')
            nts[0] += 1

    sW, sUCOL, sOCOL, sSTG, sLD, sD, sSEL0, sSEL1 = 32, 33, 34, 35, 36, 37, 38, 39
    sCHI, sCLO, sCX, sSC, sINV, sT0, sT1, sT2 = 40, 42, 44, 45, 46, 48, 49, 50
    sHI, sEXA, sU2, sM1, sM2 = 51, 52, 53, 54, 55

    UA = P.alloc(8, 4)
    UBr = P.alloc(8, 4)
    BOX = [P.alloc(4) for _ in range(4)]
    ub, pq, pqs, r2a, r3a, vI, vG = [P.alloc() for _ in range(7)]
    convP = P.copy()
    acc = {(t, j): P.alloc(4) for t in (1, 2) for j in (0, 1)}
    FT1, FT2 = [[P.alloc(4) for _ in range(4)] for _ in range(2)]
    FB = [[P.alloc(4) for _ in range(4)] for _ in range(2)]
    FM = [[P.alloc(4) for _ in range(4)] for _ in range(2)]
    Z = P.alloc(4)
    aM, aB, aT1, aT2, aQ, aQ2, aS, aS2, aR2, aR3, shz, uoff, junk = [P.alloc() for _ in range(13)]
    DV = P.alloc(2)
    KS = P.alloc(2)
    X = P.alloc(2)
    Y = P.alloc(2)
    Wp = P.alloc(2)
    tmp = P.alloc(16, 2)
    pre = P.copy()
    P1, P2, P3, P4, P5, P6, vL, poff = [pre.alloc() for _ in range(8)]

    stamp()
    a(f'''
    s_and_b32 s3, s2, 4
    s_mul_i32 s3, s3, 14
    s_load_dwordx16 s[4:19], s[0:1], s3
    s_load_dwordx4 s[20:23], s[0:1], 120
    s_cmpk_ge_u32 s2, 0x100
    s_cbranch_scc1 L_end
    s_getpc_b64 s[24:25]
    v_lshlrev_b32 {vr(tmp)}, 1, v0
    v_mov_b32 {vr(tmp + 1)}, 0
    v_lshl_add_u64 {vr(tmp, 2)}, {vr(tmp, 2)}, 4, s[24:25]
    global_load_dword {vr(junk)}, {vr(tmp, 2)}, off offset:64
    v_readfirstlane_b32 s{sW}, v0
    s_and_b32 s26, s2, 3
    s_lshl_b32 s26, s26, 8
    s_andn2_b32 s27, s2, 15
    s_or_b32 s{sUCOL}, s26, s27
    s_lshl_b32 s27, s{sUCOL}, 7
    v_lshl_add_u32 {vr(poff)}, v0, 2, s27
    s_lshr_b32 s{sW}, s{sW}, 6
    s_lshl1_add_u32 s{sT0}, s{sW}, s{sUCOL}
    s_andn2_b32 s{sT0}, s{sT0}, 3
    v_and_b32 {vr(vL)}, 63, v0
    s_cmp_lg_u32 s3, 0
    s_waitcnt lgkmcnt(0)
    s_cbranch_scc0 L_noB
    global_load_dword {vr(P5)}, {vr(poff)}, s[14:15]
    global_load_dword {vr(P6)}, {vr(poff)}, s[16:17]
L_noB:
    global_load_dword {vr(P3)}, {vr(poff)}, s[10:11]
    global_load_dword {vr(P4)}, {vr(poff)}, s[12:13]
    global_load_dword {vr(P1)}, {vr(poff)}, s[6:7]
    global_load_dword {vr(P2)}, {vr(poff)}, s[8:9]
    s_cselect_b64 s[28:29], s[18:19], s[14:15]
    s_cselect_b64 s[30:31], s[20:21], s[16:17]
    s_load_dword s{sLD}, s[28:29], s{sT0}
    s_load_dword s{sD}, s[30:31], s{sT0}
    s_cselect_b32 s{sEXA}, 4, 3
    s_xor_b32 s{sT2}, s{sW}, {6 if cfg.pfw else 0}
    s_cmp_lt_u32 s{sT2}, 2
    s_cbranch_scc0 L_nopf
    s_lshr_b32 s27, s2, 3
    s_lshl3_add_u32 s27, s27, s{sT2}
    s_lshl_b32 s27, s27, 7
    s_add_u32 s27, s27, s26
    v_lshl_add_u32 {vr(tmp)}, {vr(vL)}, 15, s27
    global_load_dword {vr(junk)}, {vr(tmp)}, s[4:5]
L_nopf:
    ''')
    stamp()
    tab1 = sum(SLOT[e] << (4 * i) for i, e in enumerate(T1))
    tab2 = sum((SLOT[e] - 8) << (4 * i) for i, e in enumerate(T2))
    lo = 0
    for sh, w, o in BOXES:
        lo |= ((1 << (2 * w + 1)) - 1) << (o + 15 + sh - w)
    m0_, m1_ = lo & (2**64 - 1), lo >> 64
    t4, t6, c1, c2, b0, b1, x_, t2, pb = tmp + 2, tmp + 4, tmp + 6, tmp + 7, tmp + 8, tmp + 9, tmp + 10, tmp + 11, tmp + 12
    ta, tb = tmp + 13, tmp + 14
    a(f'''
    s_mul_i32 s{sSTG}, s{sW}, {STG}
    v_and_b32 {vr(vI)}, 15, v0
    v_lshrrev_b32 {vr(vG)}, 4, {vr(vL)}
    s_add_u32 s{sSTG}, s{sSTG}, {STG0}
    s_mov_b32 m0, s{sSTG}
    v_mov_b32 {vr(c1)}, 0x3f80
    v_mov_b32 {vr(c2)}, 1.0
    s_mov_b32 s24, {hex(m0_ & 0xffffffff)}
    s_mov_b32 s25, {hex(m0_ >> 32)}
    s_mov_b32 s26, {hex(m1_ & 0xffffffff)}
    s_mov_b32 s27, {hex(m1_ >> 32)}
    v_cndmask_b32_e64 {vr(b0)}, 0, {vr(c1)}, s[24:25]
    v_cndmask_b32_e64 {vr(b1)}, 0, {vr(c1)}, s[26:27]
    s_lshl_b64 s[24:25], s[24:25], 1
    s_lshl_b64 s[26:27], s[26:27], 1
    v_cndmask_b32_e64 {vr(ta)}, 0, {vr(c2)}, s[24:25]
    v_cndmask_b32_e64 {vr(tb)}, 0, {vr(c2)}, s[26:27]
    v_or_b32 {vr(b0)}, {vr(b0)}, {vr(ta)}
    v_or_b32 {vr(b1)}, {vr(b1)}, {vr(tb)}
    v_lshlrev_b32 {vr(t4)}, 2, {vr(vI)}
    v_mad_i32_i24 {vr(x_)}, {vr(vG)}, -16, {vr(t4)}
    v_mad_i32_i24 {vr(ta)}, {vr(vG)}, -16, s{sSTG}
    v_add_u32 {vr(pb)}, {vr(x_)}, {vr(ta)}
    v_mov_b32 {vr(Z)}, 0
    v_mov_b32 {vr(c1)}, 0x3c00
    ds_write_addtid_b32 {vr(b0)} offset:0
    ds_write_addtid_b32 {vr(b1)} offset:256
    ds_write_addtid_b32 {vr(Z)} offset:{SLOT['z'] * ROW}
    ds_write_addtid_b32 {vr(c1)} offset:{24 * ROW}
    s_mul_i32 s{sT2}, s{sW}, {UCH}
    ''')
    for k, (sh, w, o) in enumerate(BOXES):
        a(f'ds_read2_b32 {vr(BOX[k], 2)}, {vr(pb)} offset0:{o + 31} offset1:{o + 29}')
        a(f'ds_read2_b32 {vr(BOX[k] + 2, 2)}, {vr(pb)} offset0:{o + 27} offset1:{o + 25}')
    a(f'''
    s_mov_b32 m0, s{sT2}
    s_movk_i32 s{sT0}, {ROW}
    ds_write_addtid_b32 {vr(Z)} offset:0
    ds_write_addtid_b32 {vr(Z)} offset:256
    s_mov_b32 m0, s{sSTG}
    s_mov_b32 s24, {hex(tab1 & 0xffffffff)}
    s_mov_b32 s25, {hex(tab1 >> 32)}
    s_mov_b32 s26, {hex(tab2 & 0xffffffff)}
    s_mov_b32 s27, {hex(tab2 >> 32)}
    v_lshl_add_u32 {vr(aM)}, {vr(vG)}, 4, s{sSTG}
    v_mad_u32_u24 {vr(aB)}, {vr(vI)}, s{sT0}, {vr(aM)}
    v_lshrrev_b64 {vr(t6, 2)}, {vr(t4)}, s[24:25]
    v_and_b32 {vr(t6)}, 15, {vr(t6)}
    v_mad_u32_u24 {vr(aT1)}, {vr(t6)}, s{sT0}, {vr(aM)}
    v_lshrrev_b64 {vr(t6, 2)}, {vr(t4)}, s[26:27]
    v_and_b32 {vr(t6)}, 15, {vr(t6)}
    v_mad_u32_u24 {vr(aT2)}, {vr(t6)}, s{sT0}, {vr(aM)}
    s_add_u32 s{sT0}, s{sSTG}, {R3O - 12}
    s_movk_i32 s{sT1}, {CT - 2}
    v_add_u32 {vr(r3a)}, s{sT0}, {vr(x_)}
    v_lshl_add_u32 {vr(r2a)}, {vr(x_)}, 1, s{sSTG}
    v_lshl_add_u32 {vr(t2)}, {vr(vI)}, 1, {vr(vG)}
    v_lshl_add_u32 {vr(ub)}, {vr(t2)}, 4, s{sT2}
    v_lshl_add_u32 {vr(ta)}, {vr(vI)}, 1, {vr(ta)}
    v_add_u32 {vr(tb)}, 3, {vr(vI)}
    v_and_b32 {vr(tb)}, 3, {vr(tb)}
    v_mad_u32_u24 {vr(pq)}, {vr(tb)}, s{sT1}, {vr(ta)}
    v_xor_b32 {vr(tb)}, 2, {vr(tb)}
    v_mad_u32_u24 {vr(pqs)}, {vr(tb)}, s{sT1}, {vr(ta)}
    s_movk_i32 s{sT0}, 496
    s_add_u32 s{sT1}, s{sSTG}, {R2O}
    v_lshl_add_u32 {vr(ta)}, {vr(t2)}, 3, s{sSTG}
    v_lshrrev_b32 {vr(tb)}, 1, {vr(vG)}
    v_mad_u32_u24 {vr(aQ)}, {vr(tb)}, s{sT0}, {vr(ta)}
    v_add_u32 {vr(shz)}, -8, {vr(ta)}
    v_add_u32 {vr(aQ2)}, {CT}, {vr(aQ)}
    v_min_u32 {vr(tb)}, 1, {vr(vG)}
    v_mul_u32_u24 {vr(tb)}, 192, {vr(tb)}
    v_sub_u32 {vr(tb)}, {vr(tb)}, {vr(vL)}
    v_lshl_add_u32 {vr(aS)}, {vr(tb)}, 3, s{sSTG}
    v_add_u32 {vr(aS2)}, {CT}, {vr(aS)}
    v_lshl_add_u32 {vr(ta)}, {vr(vG)}, 5, {vr(vI)}
    v_lshl_add_u32 {vr(aR2)}, {vr(ta)}, 2, s{sT1}
    v_lshl_add_u32 {vr(aR3)}, {vr(ta)}, 1, s{sSTG}
    v_mov_b32 {vr(Z + 1)}, 0
    v_mov_b32 {vr(Z + 2)}, 0
    v_mov_b32 {vr(Z + 3)}, 0
    v_mov_b32 {vr(DV)}, 0
    v_mov_b32 {vr(DV + 1)}, 0
    v_lshlrev_b32 {vr(uoff)}, 11, v0
    s_mov_b32 s56, s4
    s_mov_b32 s57, s5
    s_mov_b32 s58, 0x200000
    s_mov_b32 s59, 0x20000
    buffer_load_dwordx4 {vr(UA, 4)}, {vr(uoff)}, s[56:59], s{sUCOL} offen
    buffer_load_dwordx4 {vr(UA + 4, 4)}, {vr(uoff)}, s[56:59], s{sUCOL} offen offset:1024
    s_add_u32 s{sU2}, s{sUCOL}, 0x100000
    s_mov_b32 s{sSEL0}, 0x05040100
    s_mov_b32 s{sSEL1}, 0x07060302
    s_mov_b32 s{sHI}, 0xffff0000
    s_lshl_b32 s{sM1}, s{sW}, 8
    s_addk_i32 s{sM1}, 512
    s_add_u32 s{sM2}, s{sM1}, 2048
    s_lshl_b32 s{sCX}, s{sEXA}, 31
    s_or_b32 s{sCX}, s{sCX}, {hex(f2u(math.log2(math.e)))}
    ''')
    chi = 47274 / 32768
    clo = (math.log2(math.e) - chi) * math.log(2)
    wr, wi = tmp, tmp + 2
    q0, q1, q2, q3 = tmp + 4, tmp + 6, tmp + 8, tmp + 10
    mx, dt, cx, cy = tmp + 12, tmp + 13, tmp + 14, tmp + 15
    a(f'''
    s_mov_b32 s{sCHI}, {hex(f2u(chi))}
    s_mov_b32 s{sCLO}, {hex(f2u(clo))}
    s_lshl_b32 s{sT0}, s{sW}, 4
    v_mov_b32 {vr(dt)}, s{sCHI}
    v_mov_b32 {vr(cx)}, s{sCLO}
    s_waitcnt lgkmcnt(0)
    s_lshr_b32 s{sLD}, s{sLD}, s{sT0}
    s_lshr_b32 s{sD}, s{sD}, s{sT0}
    s_lshl_b32 s{sLD}, s{sLD}, 16
    s_lshl_b32 s{sD}, s{sD}, 16
    v_mul_f32 {vr(dt)}, s{sLD}, {vr(dt)}
    v_mul_f32 {vr(cx)}, s{sLD}, {vr(cx)}
    v_exp_f32 {vr(dt)}, {vr(dt)}
    v_writelane_b32 {vr(DV)}, s{sD}, 0
    v_fma_f32 {vr(dt)}, {vr(dt)}, {vr(cx)}, {vr(dt)}
    v_cvt_pk_bf16_f32 {vr(dt)}, {vr(dt)}, {vr(dt)}
    v_and_b32 {vr(dt)}, s{sHI}, {vr(dt)}
    v_mul_f32 {vr(cx)}, s{sCX}, {vr(dt)}
    v_mul_f32 {vr(cy)}, 0.15915494, {vr(dt)}
    {'s_cmp_ge_u32 s%d, 6' % sW if cfg.pfw else 's_cmp_lt_u32 s%d, 2' % sW}
    ''')
    stamp()
    a(f'''
    s_waitcnt vmcnt(3)
    s_cbranch_scc1 L_w3
    s_waitcnt vmcnt(2)
L_w3:
    s_cmp_lg_u32 s3, 0
    ''')
    if cfg.prio:
        a('s_setprio 3')
    stamp()
    a.hot = True

    def unpack(dst, src):
        a(f'v_lshlrev_b32 {vr(dst)}, 16, {vr(src)}\nv_and_b32 {vr(dst + 1)}, s{sHI}, {vr(src)}')
    a('s_cbranch_scc1 L_prepB')
    a.cond_begin()
    unpack(q0, P1)
    a(f'v_pk_mul_f32 {vr(q1, 2)}, {vr(q0, 2)}, s[{sCHI}:{sCHI + 1}] op_sel_hi:[1,0]')
    a(f'v_pk_mul_f32 {vr(q0, 2)}, {vr(q0, 2)}, s[{sCLO}:{sCLO + 1}] op_sel_hi:[1,0]')
    a(f'v_exp_f32 {vr(q1)}, {vr(q1)}\nv_exp_f32 {vr(q1 + 1)}, {vr(q1 + 1)}')
    unpack(wr, P3)
    unpack(wi, P4)
    a(f'v_pk_fma_f32 {vr(q1, 2)}, {vr(q1, 2)}, {vr(q0, 2)}, {vr(q1, 2)}')
    a(f'v_cvt_pk_bf16_f32 {vr(P1)}, {vr(q1)}, {vr(q1 + 1)}')
    a('s_branch L_prepC')
    a.cond_end()
    a('L_prepB:')
    a.cond_begin()
    unpack(q0, P3)
    unpack(q1, P4)
    unpack(q2, P5)
    unpack(q3, P6)
    a(f'''
    v_pk_mul_f32 {vr(wr, 2)}, {vr(q1, 2)}, {vr(q3, 2)} neg_lo:[1,0] neg_hi:[1,0]
    v_pk_mul_f32 {vr(wi, 2)}, {vr(q1, 2)}, {vr(q2, 2)}
    v_pk_fma_f32 {vr(wr, 2)}, {vr(q0, 2)}, {vr(q2, 2)}, {vr(wr, 2)}
    v_pk_fma_f32 {vr(wi, 2)}, {vr(q0, 2)}, {vr(q3, 2)}, {vr(wi, 2)}
    ''')
    a.cond_end()
    a('.p2align 3')
    a('L_prepC:')
    dpp = [f'v_max_u32_dpp {vr(mx)}, {vr(mx)}, {vr(mx)} {m} bank_mask:0xf' for m in (
        'row_shr:1 row_mask:0xf', 'row_shr:2 row_mask:0xf', 'row_shr:4 row_mask:0xf', 'row_shr:8 row_mask:0xf',
        'row_bcast:15 row_mask:0xa', 'row_bcast:31 row_mask:0xc')]
    R, RT = q2, q3
    tq = [q0, q0 + 1, q1, q1 + 1]
    seed = {p: P.alloc() for p in (1, 4, 8, 16, 32, 64, 128, 256, 512)}
    assert seed[1] == P1 and seed[4] == P2
    seeds = [dict(seed), {p: P.alloc() for p in seed} if cfg.s1 else dict(seed)]

    def prio(n):
        if cfg.prio:
            a(f's_setprio {n}\ns_nop 0')

    def sqr():
        return [f'v_pk_mul_f32 {vr(RT, 2)}, {vr(R, 2)}, {vr(R, 2)} op_sel:[1,1] op_sel_hi:[1,0] neg_lo:[1,0]',
                f'v_pk_fma_f32 {vr(R, 2)}, {vr(R, 2)}, {vr(R, 2)}, {vr(RT, 2)} op_sel:[0,0,0] op_sel_hi:[0,1,1]']

    def cvs(p):
        return f'v_cvt_pk_f16_f32 {vr(seed[p])}, {vr(R)}, {vr(R + 1)}'

    def direct(h):
        return [f'v_cos_f32 {vr(R)}, {vr(Y + h)}', f'v_sin_f32 {vr(R + 1)}, {vr(Y + h)}', f'v_exp_f32_e64 {vr(RT)}, {vr(X + h)}',
                f'v_pk_mul_f32 {vr(R, 2)}, {vr(R, 2)}, {vr(RT, 2)} op_sel_hi:[1,0]']
    d0 = direct(0)
    a(f'''
    v_max3_f32 {vr(mx)}, |{vr(wr)}|, |{vr(wr + 1)}|, |{vr(wi)}|
    v_max_f32_e64 {vr(mx)}, {vr(mx)}, |{vr(wi + 1)}|
    v_lshlrev_b32 {vr(q1)}, 16, {vr(P2)}
    v_and_b32 {vr(q1 + 1)}, s{sHI}, {vr(P2)}
    {dpp[0]}
    v_lshlrev_b32 {vr(q0)}, 16, {vr(P1)}
    v_and_b32 {vr(q0 + 1)}, s{sHI}, {vr(P1)}
    {dpp[1]}
    v_pk_mul_f32 {vr(Y, 2)}, {vr(q1, 2)}, {vr(cx, 2)} op_sel:[0,1] op_sel_hi:[1,1]
    v_pk_mul_f32 {vr(X, 2)}, {vr(q0, 2)}, {vr(cx, 2)} op_sel_hi:[1,0]
    {dpp[2]}
    {d0[0]}
    {d0[1]}
    {dpp[3]}
    {d0[2]}
    s_nop 0
    s_nop 0
    {dpp[4]}
    {d0[3]}
    {cvs(1)}
    {dpp[5]}
    {sqr()[0]}
    v_readlane_b32 s{sT0}, {vr(mx)}, 63
    {sqr()[1]}
    s_lshr_b32 s{sT0}, s{sT0}, 23
    s_max_u32 s{sT0}, s{sT0}, 5
    {sqr()[0]}
    s_sub_u32 s{sSC}, 258, s{sT0}
    {sqr()[1]}
    s_lshl_b32 s{sSC}, s{sSC}, 23
    s_sub_u32 s{sINV}, s{sT0}, s{sEXA}
    {cvs(4)}
    v_fma_mixlo_f16 {vr(Wp)}, {vr(wr)}, s{sSC}, 0
    v_fma_mixlo_f16 {vr(Wp + 1)}, {vr(wr + 1)}, s{sSC}, 0
    v_fma_mixhi_f16 {vr(Wp)}, -{vr(wi)}, s{sSC}, 0
    v_fma_mixhi_f16 {vr(Wp + 1)}, -{vr(wi + 1)}, s{sSC}, 0
    s_lshl_b32 s{sINV}, s{sINV}, 23
    v_mul_f32 {vr(KS)}, s{sINV}, {vr(dt)}
    ''')
    stamp()

    tqi = [0]

    def cmul(d, x, y, conj):
        t = tq[tqi[0] % 4]
        tqi[0] += 1
        if conj:
            return [f'v_pk_mul_f16 {vr(t)}, {vr(x)}, {vr(y)} op_sel:[1,1] op_sel_hi:[1,0]',
                    f'v_pk_fma_f16 {vr(d)}, {vr(x)}, {vr(y)}, {vr(t)} op_sel:[0,0,0] op_sel_hi:[0,1,1] neg_hi:[1,0,0]']
        return [f'v_pk_mul_f16 {vr(t)}, {vr(x)}, {vr(y)} op_sel:[1,1] op_sel_hi:[1,0] neg_lo:[1,0]',
                f'v_pk_fma_f16 {vr(d)}, {vr(x)}, {vr(y)}, {vr(t)} op_sel:[0,0,0] op_sel_hi:[0,1,1]']
    Greg = {e: P.alloc() for e in SLOT if e not in (0, 'z', 'M')}
    Ereg = {1: seed[8], 2: seed[16], 4: seed[32], 8: seed[64]}
    for i in (3, 5, 6, 7):
        Ereg[i] = P.alloc()
    for i, e in zip(range(9, 16), (516, 772, 1544, 1800, 256, 258, 262)):
        Ereg[i] = Greg[e]
    GP = {1: (0, 1), 2: (1, 1), 3: (2, 1), 4: (0, 4), 5: (1, 4), 6: (2, 4), 7: (3, 4), 8: (0, 8), 256: (0, 256), 258: (2, 256),
          260: (4, 256), 262: (6, 256), 264: (8, 256), 516: (4, 512), 520: (8, 512), 772: (260, 512), 776: (264, 512),
          1032: (520, 512), 1288: (776, 512), 1544: (1032, 512), 1800: (1288, 512)}

    def wrow(reg, row):
        return ('d', f'ds_write_addtid_b32 {vr(reg)} offset:{row * ROW}')

    def rdf(F, addr, row0):
        return [('d', f'ds_read_b128 {vr(F[ks], 4)}, {vr(addr)} offset:{row0 * ROW + 64 * ks}') for ks in range(4)]

    def stream(h, items):
        G = dict(Greg)
        G[0] = Wp + h
        out = []
        for it in items:
            hh = h
            if it[0] in 'SD':
                hh = 1
            seed.update(seeds[hh])
            Ereg.update({1: seed[8], 2: seed[16], 4: seed[32], 8: seed[64]})
            if it[0] == 'D':
                out += [('v', t) for t in direct(1)[:3]] + [('v', 's_nop 0'), ('v', 's_nop 0'), ('v', direct(1)[3]), ('v', cvs(1))]
            if it[0] == 'g':
                e = it[1]
                if e:
                    s, p = GP[e]
                    out += [('v', t) for t in cmul(G[e], G[s], seed[p], True)]
                out.append(wrow(G[e], SLOT[e]))
            elif it[0] == 'e':
                i = it[1]
                hb = 1 << (i.bit_length() - 1)
                out += [('v', t) for t in cmul(Ereg[i], Ereg[i - hb], Ereg[hb], False)]
                out.append(wrow(Ereg[i], 24 + i))
            elif it[0] in 'sS':
                p = it[1]
                out += [('v', t) for t in sqr()]
                if p in seed:
                    out.append(('v', cvs(p)))
            elif it[0] == 'w':
                p = it[1]
                out.append(wrow(seed[p], SLOT['M'] if p == 128 else 24 + p // 8))
            elif it[0] == 'r':
                out += {'M': rdf(FM[h], aM, SLOT['M']), 'B': rdf(FB[h], aB, 24), 'T1': rdf(FT1, aT1, 0), 'T2': rdf(FT2, aT2, 8)}[it[1]]
        return out

    def av(t, pend):
        w_ = Ins(t).wr
        while any(Ins(p).rd & w_ for p in pend):
            a(pend.pop(0))
        a(t)

    def emit_grouped(st, pend, minp=2):
        vt = 0
        for k, (kind, t) in enumerate(st):
            if kind == 'd':
                pend.append(t)
                nxt = st[k + 1][0] if k + 1 < len(st) else 'v'
                if nxt == 'd':
                    continue
            else:
                av(t, pend)
                vt += 8 if t.split()[0][:5] in ('v_cos', 'v_sin', 'v_exp') else 4
                if k + 1 < len(st) and (st[k + 1][0] == 'd' or 'v_pk_mul' in t):
                    continue
            if vt >= cfg.grp and len(pend) >= minp:
                n = min(len(pend), max(2, (vt - 8) // 4 + (1 if len(pend) > 4 else 0)))
                for _ in range(n):
                    a(pend.pop(0))
                vt = 0

    def mparts(h):
        prods = []
        for ks in range(4):
            for r in range(4):
                prods += cmul(FM[h][ks] + r, FB[h][ks] + r, FM[h][ks] + r, False)
        order = [(1, 0, 0), (1, 0, 1), (1, 0, 2), (1, 0, 3), (2, 0, 0), (1, 1, 0), (2, 1, 0), (2, 0, 1),
                 (2, 0, 2), (1, 1, 1), (2, 1, 1), (2, 0, 3), (1, 1, 2), (2, 1, 2), (1, 1, 3), (2, 1, 3)]
        npr = [2, 2, 2, 2, 2, 2, 2, 2, 2, 2, 2, 4, 4, 2, 0, 0]
        mf = []
        for t, j, ks in order:
            FA = (FT1 if t == 1 else FT2)[ks]
            FBx = (FB if j == 0 else FM)[h][ks]
            c = '0' if (h == 0 and ks == 0) else vr(acc[t, j], 4)
            mf.append(f'v_mfma_f32_16x16x32_f16 {vr(acc[t, j], 4)}, {vr(FA, 4)}, {vr(FBx, 4)}, {c}')
        return mf, prods, npr

    def dsid(reg):
        ids = [oid for oid, d in a.dsq if ('v', reg) in d]
        return ids[-1] if ids else -1

    g, e, s, w, r = [lambda x, k=k: (k, x) for k in 'geswr']
    pend = []
    S, D_ = [lambda x, k=k: (k, x) for k in 'SD']
    if cfg.s1 == 0:
        it0 = [g(0), g(1), g(2), s(8), w(8), g(3), g(4), s(16), w(16), g(5), g(6), s(32), w(32), g(7), e(3), s(64), w(64), g(8),
               e(5), s(128), w(128), r('M'), e(6), e(7), s(256), e(9), e(10), e(11), s(512), e(12), e(13), e(14), e(15),
               g(256), g(258), g(260), g(262), g(264), g(516), g(520), g(772), g(776),
               g(1032), g(1288), g(1544), g(1800), r('B'), r('T1'), r('T2')]
    elif cfg.s1 == 1:
        it0 = [g(0), g(1), s(8), w(8), g(2), s(16), w(16), e(3), s(32), w(32), e(5), s(64), w(64), e(6), s(128), w(128), r('M'), e(7), s(256),
               e(9), e(10), s(512), e(11), e(12), e(13), D_(0), e(14), e(15), r('B'), S(2), g(3), S(4), g(4), g(5), S(8), g(6), g(7), S(16), g(8),
               g(256), S(32), g(258), g(260), S(64), g(262), g(264), r('T1'), S(128), g(516), S(256), g(520), S(512), g(772), g(776),
               g(1032), g(1288), g(1544), g(1800), r('T2')]
    else:
        it0 = [g(0), s(8), w(8), s(16), w(16), s(32), w(32), s(64), w(64), s(128), w(128), r('M'), s(256), s(512), g(1), e(3), D_(0), g(2), e(5), S(2), e(6), S(4), e(7),
               S(8), e(9), S(16), e(10), S(32), e(11), S(64), e(12), S(128), e(13), S(256), e(14), S(512), e(15), r('B'), g(3), g(4), g(5), g(6), g(7), g(8),
               g(256), g(258), g(260), g(262), g(264), r('T1'), g(516), g(520), g(772), g(776),
               g(1032), g(1288), g(1544), g(1800), r('T2')]
    emit_grouped(stream(0, it0), pend)
    if cfg.s1:
        while pend:
            a(pend.pop(0))
    stamp()
    a(f'''
    s_bitcmp1_b32 s2, 3
    s_cbranch_scc1 L_ld2
    s_cmp_ge_u32 s{sW}, 2
    s_cbranch_scc1 L_nold2
L_ld2:
    buffer_load_dwordx4 {vr(UBr, 4)}, {vr(uoff)}, s[56:59], s{sU2} offen
    buffer_load_dwordx4 {vr(UBr + 4, 4)}, {vr(uoff)}, s[56:59], s{sU2} offen offset:1024
L_nold2:
    ''')
    if cfg.s1 == 0:
        d1 = direct(1)
        a('\n'.join(d1[:3]))
        for _ in range(4):
            a(pend.pop(0))
        emit_grouped([('v', d1[3]), ('v', cvs(1))] + stream(1, [s(2), s(4), s(8), s(16), s(32), s(64), s(128), s(256), s(512)]), pend, 1)
        while pend:
            a(pend.pop(0))
    if cfg.kbar:
        a('s_barrier\ns_nop 0')
    prio(2)
    st1 = stream(1, [w(128), r('M'), w(8), w(16), w(32), w(64), g(0), e(3), e(5), e(6), e(7), e(9), e(10), e(11), e(12), e(13), e(14), e(15), r('B'),
                     g(1), g(2), g(3), g(4), g(5), g(6), g(7), g(8), g(256), g(258), g(260), g(262), g(264),
                     g(516), g(520), g(772), g(776), g(1032), g(1288), g(1544), g(1800)])
    mf, prods, npr = mparts(0)
    for n in range(16):
        while st1 and st1[0][0] == 'd':
            pend.append(st1.pop(0)[1])
        if n == 0 and dsid(FT1[3]) > 0:
            a.wait_ds(dsid(FT1[3] if cfg.s1 else FT2[3]))
            a('s_nop 0')
        if n == 4 and dsid(FT2[3]) > 0:
            a.wait_ds(dsid(FT2[3]))
            a('s_nop 0')
        vl = [prods.pop(0) for _ in range(npr[n])]
        nv = 4 if n < 11 else 6 - npr[n]
        newd = []
        while st1 and nv > 0:
            kind, t = st1.pop(0)
            if kind == 'd':
                newd.append(t)
            else:
                vl.append(t)
                nv -= 1
        a(mf[n])
        n1, k1 = {0: (3, 6), 1: (0, 6), 2: (2, 4), 3: (1, 4)}[cfg.mid]
        for _ in range(min(n1, len(pend))):
            a(pend.pop(0))
        for t in vl[:k1]:
            av(t, pend)
        for _ in range(min(3 - n1, len(pend))):
            a(pend.pop(0))
        for t in vl[k1:]:
            av(t, pend)
        pend += newd
    while st1 and st1[0][0] == 'd':
        pend.append(st1.pop(0)[1])
    assert not st1, st1
    stamp()
    prio(1)
    while any(('offset:%d' % (SLOT[x] * ROW)) == p.split()[-1] for p in pend for x in T1):
        a(pend.pop(0))
    for kind, t in rdf(FT1, aT1, 0):
        a(t)
    while pend:
        a(pend.pop(0))
    for kind, t in rdf(FT2, aT2, 8):
        a(t)

    def stage_ops(U, t0):
        v, d = [], []
        for ch in range(8):
            k = ch // 2
            v.append(f'v_perm_b32 {vr(t0 + ch)}, {vr(U + 4 + k)}, {vr(U + k)}, s{sSEL1 if ch & 1 else sSEL0}')
            d.append(f'ds_write_addtid_b32 {vr(t0 + ch)} offset:{ch * UCH}')
        return v, d
    mf, prods, npr = mparts(1)
    for _ in range(8):
        a(prods.pop(0))
    npr = [2] * 12 + [0] * 4
    a.hot = False
    sv, sd = stage_ops(UA, FB[0][0])
    for n in range(16):
        if n == 0:
            a.wait_ds(dsid(FT1[3]))
        if n == 4:
            a.wait_ds(dsid(FT2[3]))
        if n == 12:
            a(f'''
            s_bitcmp1_b32 s2, 3
            s_waitcnt vmcnt(2)
            s_cbranch_scc1 L_st1
            s_cmp_ge_u32 s{sW}, 2
            s_waitcnt vmcnt(0)
            s_cbranch_scc1 L_st1
            ''')
            a.cond_begin()
            v, d = stage_ops(UBr, FM[0][0])
            a(f's_mov_b32 m0, s{sM2}')
            a('\n'.join(v + d))
            a.cond_end()
            a(f'L_st1:\ns_mov_b32 m0, s{sM1}')
        a(mf[n])
        if n >= 13:
            a(sd.pop(0) + '\n' + sd.pop(0))
        for _ in range(npr[n]):
            a(prods.pop(0))
        if n >= 12:
            a(sv.pop(0) + '\n' + sv.pop(0))
    stg_last = a(sd.pop(0) + '\n' + sd.pop(0))
    stamp()
    prio(0)
    a.hot = True
    PK = [FT1[0], FT1[1]]
    K2, K3 = FT1[2], FT1[2] + 2

    def scale(key, h):
        rr = acc[key] + 2 * h
        if cfg.vmul:
            if key == (1, 0) and h == 0:
                return f'v_fma_f32 {vr(rr)}, {vr(rr)}, {vr(KS)}, {vr(DV)}\nv_mul_f32_e64 {vr(rr + 1)}, {vr(KS)}, {vr(rr + 1)}'
            return f'v_mul_f32 {vr(rr)}, {vr(KS)}, {vr(rr)}\nv_mul_f32 {vr(rr + 1)}, {vr(KS)}, {vr(rr + 1)}'
        if key == (1, 0) and h == 0:
            return f'v_pk_fma_f32 {vr(rr, 2)}, {vr(rr, 2)}, {vr(KS, 2)}, {vr(DV, 2)} op_sel_hi:[1,0,1]'
        return f'v_pk_mul_f32 {vr(rr, 2)}, {vr(rr, 2)}, {vr(KS, 2)} op_sel_hi:[1,0]'

    def qwrites(D, a1, a2, o):
        return [f'ds_write_b64 {vr(a1)}, {vr(D, 2)} offset:{2 * CT + o}',
                f'ds_write_b64 {vr(a1)}, {vr(D + 2, 2)} offset:{3 * CT + o}',
                f'ds_write2_b32 {vr(a1)}, {vr(D + 1)}, {vr(D)} offset0:{o // 4} offset1:{o // 4 + 3}',
                f'ds_write2_b32 {vr(a2)}, {vr(D + 3)}, {vr(D + 2)} offset0:{o // 4} offset1:{o // 4 + 3}']
    for j in range(2):
        a('\n'.join(scale((t, j), h) for t in (1, 2) for h in range(2)))
        v5 = [acc[1, j] + k for k in range(4)] + [acc[2, j]]
        for k, x in enumerate((3, 1, 4, 2)):
            a(f'v_cvt_pk_bf16_f32 {vr(PK[j] + k)}, {vr(v5[x])}, {vr(v5[x - 1])}')
        a(f'v_cvt_pk_bf16_f32 {vr(K2 + j)}, {vr(acc[2, j] + 1)}, {vr(acc[2, j] + 2)}')
        if j == 0:
            a('\n'.join(qwrites(PK[0], aQ, aQ2, 128)))
    a(f'''
    v_cvt_pk_bf16_f32 {vr(K3)}, {vr(acc[2, 0] + 3)}, {vr(acc[2, 1] + 3)}
    s_mov_b64 exec, 1
    v_lshrrev_b32 {vr(Z + 2)}, 16, {vr(PK[0] + 1)}
    s_brev_b32 exec_lo, 1
    s_brev_b32 exec_hi, 1
    v_and_b32 {vr(Z)}, s{sHI}, {vr(K2 + 1)}
    v_lshrrev_b32 {vr(Z + 1)}, {vr(shz)}, {vr(K2 + 1)}
    v_or_b32 {vr(Z + 3)}, {vr(Z)}, {vr(Z + 1)}
    s_mov_b64 exec, -1
    ds_write2_b32 {vr(aR2)}, {vr(K2)}, {vr(K2 + 1)} offset0:0 offset1:16
    ds_write_b16 {vr(aR3)}, {vr(K3)} offset:{R3O}
    ds_write_b16_d16_hi {vr(aR3)}, {vr(K3)} offset:{R3O + 32}
    ''')
    a('\n'.join(qwrites(Z, aS, aS2, 120) + qwrites(PK[1], aQ, aQ2, 128 + 256)))
    a.wait_ds(stg_last)
    a('s_bitcmp1_b32 s2, 3')
    a.hot = False
    stamp()
    a('s_barrier')
    stamp()
    a('s_cbranch_scc1 L_hi')
    dsq0 = list(a.dsq)
    ts0 = nts[0]
    hiwater = [P.hi]

    def conv(role):
        a.dsq = list(dsq0)
        nts[0] = ts0
        Q = convP.copy()
        Q.release(UA, 8)
        if role == 'lo':
            Q.release(UBr, 8)
        tiles = [0, 1, 2, 3, 4] if role == 'lo' else [5, 6, 7]
        slots = []

        def W16(tau): return ('U', 512 * tau - 32)
        def W24(tau): return ('U', 512 * tau - 48)

        def box2(tau):
            for ph, (ww, b) in enumerate(((W16, 0), (W16, 1), (W24, 0), (W24, 1))):
                slots.append(('mf', ('D', tau, ph), ww(tau), ('BOX', b)))

        def box3(tau):
            slots.append(('mf', ('D', tau, 4), W16(tau), ('BOX', 2)))
            slots.append(('mf', ('D', tau, 5), W24(tau), ('BOX', 3)))

        def far2(tau):
            for h in range(2):
                for mu in (2, 3, 4):
                    if tau + mu in tiles:
                        slots.append(('mf', ('Y', tau + mu), ('V', tau, h), ('R2', mu, h)))

        def far3(tau):
            for mu in (4, 5, 6, 7):
                if tau + mu in tiles:
                    slots.append(('mf', ('Y', tau + mu), ('V', tau, 2), ('R3', mu)))

        def spec(t):
            slots.append(('mf', ('Y', t), ('A', 17), W16(t - 4)))

        def near(t, ms=None):
            for m in (ms if ms is not None else range(min(16, 8 * t + 7), -1, -1)):
                slots.append(('mf', ('Y', t), ('A', m), ('U', 64 * (8 * t - m) - 32)))

        def fin(t):
            slots.append(('fin', t))
        def mix(f1, f2):
            n0 = len(slots)
            f1()
            n1 = len(slots)
            f2()
            x1, x2 = slots[n0:n1], slots[n1:]
            out, i2 = [], 0
            for i1, z in enumerate(x1):
                while i2 < len(x2) and i2 * len(x1) <= i1 * len(x2):
                    out.append(x2[i2])
                    i2 += 1
                out.append(z)
            slots[n0:] = out + x2[i2:]
        if role == 'lo':
            if cfg.lo_order == 0:
                box2(0); box3(0); box2(1); box2(2)
                far2(0); far3(0); far2(1); far2(2); spec(4)
                for t in tiles:
                    near(t); fin(t)
            elif cfg.lo_order == 2:
                box2(0); box3(0); box2(1); box2(2)
                far2(0); far3(0); spec(4)
                near(0); fin(0)
                far2(1); near(1); fin(1)
                far2(2); near(2); fin(2)
                near(3); fin(3); near(4); fin(4)
            elif cfg.lo_order == 3:
                box2(0); box3(0); box2(1); box2(2)
                mix(lambda: near(0), lambda: (far2(0), far3(0), spec(4))); fin(0)
                mix(lambda: near(1), lambda: (far2(1), far2(2))); fin(1)
                near(2); fin(2)
                near(3); fin(3); near(4); fin(4)
            else:
                box2(0); box3(0); box2(1)
                near(0); fin(0)
                far2(0); far3(0); spec(4)
                near(1); fin(1)
                far2(1); box2(2)
                near(2); fin(2)
                far2(2); near(3); fin(3); near(4); fin(4)
        else:
            box2(1); box3(1); box3(0); box2(2); box3(2)
            far2(1); far3(1); far3(0); spec(5)
            box2(3); box3(3)
            slots.append(('stage2',))
            far2(2); far3(2); spec(6)
            slots.append(('bar2',))
            far2(3); far3(3); spec(7)
            if cfg.hi_order == 0:
                near(5, range(16, 7, -1)); box2(4); near(5, range(7, -1, -1)); fin(5)
                far2(4); box2(5); near(6); fin(6)
                far2(5); near(7); fin(7)
            elif cfg.hi_order == 1:
                near(5, range(16, 7, -1)); box2(4)
                mix(lambda: near(5, range(7, -1, -1)), lambda: near(6, range(16, 7, -1))); fin(5)
                box2(5); far2(4); near(6, range(7, -1, -1)); fin(6)
                far2(5); near(7); fin(7)
            else:
                near(5, [16]); box2(4); box2(5); near(5, range(15, 7, -1))
                mix(lambda: near(5, range(7, -1, -1)), lambda: (far2(4), far2(5))); fin(5)
                near(6); fin(6)
                near(7); fin(7)
        uses = {}
        for si, sl in enumerate(slots):
            if sl[0] == 'mf':
                new = list(sl)
                for pos in (2, 3):
                    k = sl[pos]
                    if k[0] == 'U':
                        gen_, last_ = uses.get(k, (0, si))
                        if si - last_ > 48:
                            gen_ += 1
                        uses[k] = (gen_, si)
                        new[pos] = k + (gen_,)
                slots[si] = tuple(new)
        first, last = {}, {}
        for si, sl in enumerate(slots):
            if sl[0] == 'mf':
                for k in sl[1:]:
                    first.setdefault(k, si)
                    last[k] = si
        bar2 = [si for si, sl in enumerate(slots) if sl[0] == 'bar2']
        bar2 = bar2[0] if bar2 else -1
        reg = {('BOX', k): BOX[k] for k in range(4)}
        loads = [[k, 0] for k in sorted(first, key=lambda k: first[k]) if k[0] in ('A', 'U', 'R2', 'R3')]

        def load_ins(k):
            rr = reg[k]
            if k[0] == 'U':
                return [(f'ds_read_b128 {vr(rr, 4)}, {vr(ub)} offset:{512 + k[1]}', 4)]
            if k[0] == 'A':
                base, o = (pqs, 1272 + 162) if k[1] == 17 else (pq, 64 * k[1] + 158)
                return [(f'ds_read_b64 {vr(rr, 2)}, {vr(base)} offset:{o}', 2),
                        (f'ds_read_b64 {vr(rr + 2, 2)}, {vr(base)} offset:{o - 8}', 2)]
            if k[0] == 'R2':
                o = R2O - 24 + 8 * (16 * (k[1] - 2) + 3 - 2 * k[2])
                return [(f'ds_read_b64 {vr(rr, 2)}, {vr(r2a)} offset:{o}', 2),
                        (f'ds_read_b64 {vr(rr + 2, 2)}, {vr(r2a)} offset:{o - 8}', 2)]
            o = 16 * (k[1] - 4)
            return [(f'ds_read2_b32 {vr(rr, 2)}, {vr(r3a)} offset0:{o + 3} offset1:{o + 2}', 4),
                    (f'ds_read2_b32 {vr(rr + 2, 2)}, {vr(r3a)} offset0:{o + 1} offset1:{o}', 4)]

        def needs_stage2(k):
            return role == 'hi' and k[0] == 'U' and k[1] // 2 + 271 >= 1024

        def issue(item, must=False):
            k = item[0]
            if k not in reg:
                if not must and len(Q.free) < cfg.rsv:
                    return None
                rr = Q.alloc(4)
                assert rr is not None, 'out of registers'
                reg[k] = rr
            ins = load_ins(k)
            a(ins[item[1]][0])
            c = ins[item[1]][1]
            item[1] += 1
            if item[1] == len(ins):
                loads.remove(item)
            return c

        def do_loads(si, nmax):
            n, spent = 0, 0
            for item in list(loads):
                k = item[0]
                urgent = first[k] - si <= cfg.look
                if not urgent and (k[0] == 'U' or spent >= 4):
                    continue
                if needs_stage2(k) and si < bar2:
                    continue
                while item in loads and n < nmax and (urgent or spent < 4):
                    c = issue(item)
                    if c is None:
                        return
                    n += 1
                    spent += c

        def edf(si, nd, hasv):
            av_ = [it for it in loads if not (needs_stage2(it[0]) and si < bar2)]
            if not av_ or nd:
                return
            it = av_[0]
            narrow = it[0][0] in ('A', 'R2')
            if narrow and hasv and it[1] == 0 and first[it[0]] - si > cfg.look:
                wide = [x for x in av_[1:6] if x[0][0] not in ('A', 'R2')]
                if wide:
                    it, narrow = wide[0], False
            if issue(it) is None:
                return
            if narrow and (not hasv or first[it[0]] - si <= 3):
                av_ = [x for x in loads if x[0][0] in ('A', 'R2')]
                if av_:
                    issue(av_[0])

        vq, dq, evq = [], [], []
        ytmp = Q.alloc(2)
        sdat = Q.alloc(4)
        yw, yr, st, ta_ = [Q.alloc() for _ in range(4)]
        late = [f'v_mul_u32_u24 {vr(yw)}, 144, {vr(vG)}',
                f'v_lshl_add_u32 {vr(yw)}, {vr(vI)}, 3, {vr(yw)}',
                f'v_add_u32 {vr(yw)}, s{sSTG}, {vr(yw)}',
                f'v_lshrrev_b32 {vr(ta_)}, 2, {vr(vI)}',
                f'v_mul_u32_u24 {vr(yr)}, {STG - 4 * 144}, {vr(ta_)}',
                f'v_and_b32 {vr(st)}, 0xff, v0',
                f'v_lshrrev_b32 {vr(ta_)}, 4, {vr(st)}',
                f'v_lshl_add_u32 {vr(yr)}, {vr(ta_)}, 3, {vr(yr)}',
                f'v_mul_u32_u24 {vr(ta_)}, 144, {vr(vI)}',
                f'v_add3_u32 {vr(yr)}, {vr(yr)}, {vr(ta_)}, s{sT1}',
                f'v_lshlrev_b32 {vr(st)}, 11, {vr(st)}']
        for t in late:
            vq.append([0, t, None, [], None])

        def pop_v(idx=0):
            _, text, key, frees, cb = vq.pop(idx)
            a(text)
            for rr, n in frees:
                Q.release(rr, n)
            if cb:
                cb()

        def make_v(tau, which):
            rdy = len(a.ins) + 8
            if which == 2:
                rr = reg[('V', tau, 2)] = Q.alloc(4)
                d0_, d1_ = reg[('D', tau, 4)], reg[('D', tau, 5)]
                for i in range(4):
                    vq.append([rdy, f'v_cvt_pk_bf16_f32 {vr(rr + i)}, {vr(d0_ + i)}, {vr(d1_ + i)}', ('V', tau, 2), [(d0_, 4), (d1_, 4)] if i == 3 else [], None])
            else:
                d = [reg[('D', tau, p)] for p in range(4)]
                for h in range(2):
                    rr = reg[('V', tau, h)] = Q.alloc(4)
                    for i in range(4):
                        kk = 2 * h + i // 2
                        p = 2 * (i % 2)
                        vq.append([rdy, f'v_cvt_pk_bf16_f32 {vr(rr + i)}, {vr(d[p] + kk)}, {vr(d[p + 1] + kk)}', ('V', tau, h),
                                   [(x, 4) for x in d] if (h, i) == (1, 3) else [], None])

        def store_block(t):
            k = tiles.index(t)
            lab = f'L_ns_{role}{t}'
            a(f's_bitcmp1_b32 s{sW}, 2')
            a('s_barrier')
            a(f's_cbranch_scc{1 if (len(tiles) - 1 - k) % 2 == 0 else 0} {lab}')
            a.cond_begin()
            a(f'''
            ds_read_b64_tr_b16 {vr(sdat, 2)}, {vr(yr)} offset:{YT * k}
            ds_read_b64_tr_b16 {vr(sdat + 2, 2)}, {vr(yr)} offset:{YT * k + 4 * STG}
            s_add_u32 s{sT0}, s{sOCOL}, {t * 256 * 2048}
            s_waitcnt lgkmcnt(0)
            buffer_store_dwordx4 {vr(sdat, 4)}, {vr(st)}, s[60:63], s{sT0} offen
            ''')
            a.cond_end()
            a(f'{lab}:')
            stamp()

        def service(si, final=False):
            nd = 0
            while dq and (final or nd < (1 if (cfg.sched and vq) else 2)):
                text, cb = dq.pop(0)
                oid = a(text)
                nd += 1
                if cb:
                    cb(oid)
            if not final:
                if cfg.sched:
                    edf(si, nd, bool(vq and vq[0][0] <= len(a.ins) + 1))
                else:
                    do_loads(si, max(cfg.bg - nd, 0))
            nv = 0
            while vq and (final or (vq[0][0] <= len(a.ins) and nv < cfg.vmax)):
                pop_v()
                nv += 1
            if final and dq:
                return service(si, True)
            while evq and (final or evq[0][0] <= si):
                _, oid, t = evq.pop(0)
                a.wait_ds(oid)
                store_block(t)

        def pending_id(k):
            if k not in reg or any(it[0] == k for it in loads):
                return None
            rs = {('v', reg[k] + i) for i in range(4)}
            ids = [oid for oid, d in a.dsq if d & rs]
            return ids[-1] if ids else None

        started = set()
        cur = [0]
        stage_last = [None]
        do_loads(0, cfg.burst)
        a(f'''
        s_mov_b32 s60, s22
        s_mov_b32 s61, s23
        s_mov_b32 s62, 0x400000
        s_mov_b32 s63, 0x20000
        s_and_b32 s{sT0}, s2, 4
        s_lshl_b32 s{sT0}, s{sT0}, 8
        s_add_u32 s{sOCOL}, s{sUCOL}, s{sT0}
        s_mov_b32 s{sT1}, {STG0 + YO}
        ''')
        for si, sl in enumerate(slots):
            cur[0] = si
            if sl[0] == 'mf':
                _, dk, ak, bk = sl
                for k in (ak, bk):
                    for item in [it for it in loads if it[0] == k]:
                        while item in loads:
                            issue(item, True)
                    while any(v[2] == k for v in vq):
                        pop_v()
                need = [x for x in (pending_id(ak), pending_id(bk)) if x]
                if need and si > 3:
                    nx = [z for z in slots[si + 1: si + cfg.wq] if z[0] == 'mf']
                    for z in nx:
                        need += [x for x in (pending_id(z[2]), pending_id(z[3])) if x]
                    a.wait_ds(max(need))
                if dk not in reg:
                    reg[dk] = Q.alloc(4)
                    assert reg[dk] is not None
                c = vr(reg[dk], 4) if dk in started else '0'
                started.add(dk)
                a(f'v_mfma_f32_16x16x32_bf16 {vr(reg[dk], 4)}, {vr(reg[ak], 4)}, {vr(reg[bk], 4)}, {c}')
                for k in (ak, bk):
                    if last[k] == si:
                        Q.release(reg[k], 4)
                if dk[0] == 'D' and dk[2] == 3:
                    make_v(dk[1], 0)
                if dk[0] == 'D' and dk[2] == 5:
                    make_v(dk[1], 2)
                service(si)
            elif sl[0] == 'fin':
                t = sl[1]
                y = reg[('Y', t)]
                k = tiles.index(t)

                def after(t=t, k=k):
                    dq.append([f'ds_write_b64 {vr(yw)}, {vr(ytmp, 2)} offset:{YO + YT * k}',
                               lambda oid: evq.append([cur[0] + cfg.bard, oid, t])])
                vq.append([len(a.ins) + 8, f'v_cvt_pk_bf16_f32 {vr(ytmp)}, {vr(y)}, {vr(y + 1)}', None, [], None])
                vq.append([len(a.ins) + 8, f'v_cvt_pk_bf16_f32 {vr(ytmp + 1)}, {vr(y + 2)}, {vr(y + 3)}', None, [(y, 4)], after])
            elif sl[0] == 'stage2':
                t0 = Q.alloc(8)
                v, d = stage_ops(UBr, t0)
                stamp()
                a(f's_waitcnt vmcnt(0)\ns_mov_b32 m0, s{sM2}')
                stamp()
                newv = []
                for i in range(8):
                    def after(i=i):
                        def cb(oid):
                            stage_last[0] = oid
                            Q.release(t0 + i, 1)
                        dq.append([d[i], cb])
                    newv.append([0, v[i], 'stg', [(UBr, 8)] if i == 7 else [], after])
                vq[0:0] = newv
            elif sl[0] == 'bar2':
                while any(v[2] == 'stg' for v in vq):
                    pop_v()
                while dq:
                    text, cb = dq.pop(0)
                    cb(a(text))
                a.wait_ds(stage_last[0])
                a('s_barrier')
                stamp()
        service(len(slots), True)
        hiwater.append(Q.hi)
        finish()

    def finish():
        if cfg.amp >= 0:
            lab = f'L_spin{len(hiwater)}'
            a('s_waitcnt vmcnt(0)')
            stamp()
            k = min(cfg.amp, nts[0] - 1)
            a(f'''
            s_memrealtime s[24:25]
            s_waitcnt lgkmcnt(0)
            s_sub_u32 s{sT0}, s{64 + 2 * k}, s64
            s_min_u32 s{sT0}, s{sT0}, 30000
            s_mul_i32 s{sT0}, s{sT0}, 10
{lab}:
            s_sleep 8
            s_memrealtime s[26:27]
            s_waitcnt lgkmcnt(0)
            s_sub_u32 s26, s26, s24
            s_cmp_lt_u32 s26, s{sT0}
            s_cbranch_scc1 {lab}
            ''')
        if cfg.ts:
            a('s_waitcnt vmcnt(0)')
            stamp()
            a(f'''
            s_load_dwordx2 s[24:25], s[0:1], 144
            s_waitcnt lgkmcnt(0)
            s_mov_b32 s26, 0x10000000
            s_mov_b32 s27, 0x20000
            ''')
            a(f's_lshl_b32 s{sT0}, s2, 3\ns_add_u32 s{sT0}, s{sT0}, s{sW}\ns_lshl_b32 s{sT0}, s{sT0}, 7\nv_mov_b32 v2, s{sT0}')
            for k in range(nts[0]):
                a(f's_sub_u32 s{sT1}, s{64 + 2 * k}, s64\nv_mov_b32 v3, s{sT1}\nbuffer_store_dword v3, v2, s[24:27], 0 offen offset:{4 * k}')
        a('s_endpgm')

    conv('lo')
    a('.p2align 3')
    a('L_hi:')
    conv('hi')
    a('L_end:\ns_endpgm')
    a.hazards()
    a.align8()
    size = a.measure()
    head = f'; @launch grid=(256,1,1) block=(512,1,1) lds={LDS}\n'
    head += f'''.amdgcn_target "amdgcn-amd-amdhsa--gfx950"
.text
.globl {NAME}_kernel
.p2align 8
.type {NAME}_kernel,@function
{NAME}_kernel:
'''
    pad = f'.fill {(16384 + 256 - size) // 4}, 4, 0xbf810000\n'
    tail = f'''.section .rodata,"a"
.p2align 6
.amdhsa_kernel {NAME}_kernel
  .amdhsa_next_free_vgpr 256
  .amdhsa_next_free_sgpr 102
  .amdhsa_accum_offset 256
  .amdhsa_group_segment_fixed_size 0
  .amdhsa_kernarg_size 152
  .amdhsa_user_sgpr_count 2
  .amdhsa_user_sgpr_kernarg_segment_ptr 1
  .amdhsa_system_sgpr_workgroup_id_x 1
.end_amdhsa_kernel
'''
    print(f'code size {size} B, vgpr highwater {hiwater}, stamps {nts[0]}, LDS {LDS}', file=sys.stderr)
    return head + a.text() + pad + tail


if __name__ == '__main__':
    cfg = Cfg()
    out = sys.argv[1]
    for kv in sys.argv[2:]:
        k, v = kv.split('=')
        setattr(cfg, k, type(getattr(cfg, k))(int(v)))
    open(out, 'w').write(gen(cfg))
```

```python
import sys
sys.path.insert(0, 'work')
from mblib import *
PRO = """
    s_memrealtime s[30:31]
    s_memtime s[12:13]
    s_load_dwordx4 s[4:7], s[0:1], 0
    s_load_dwordx4 s[24:27], s[0:1], 16
    v_lshrrev_b32 v200, 6, v0
    s_nop 1
    v_readfirstlane_b32 s20, v200
    s_waitcnt lgkmcnt(0)
    s_memtime s[36:37]
"""
def mapping(xcd_aware):
    if xcd_aware:
        s = """
    s_and_b32 s21, s2, 7
    s_lshl_b32 s21, s21, 5
    s_lshr_b32 s22, s2, 3
    s_add_u32 s21, s21, s22
"""
    else:
        s = "    s_mov_b32 s21, s2\n"
    s += """
    s_cmp_ge_u32 s21, 128
    s_cselect_b32 s8, s6, s4
    s_cselect_b32 s9, s7, s5
    s_mov_b32 s10, 0x200000
    s_mov_b32 s11, 0x20000
    s_mov_b32 s16, s24
    s_mov_b32 s17, s25
    s_mov_b32 s18, 0x400000
    s_mov_b32 s19, 0x20000
    s_and_b32 s22, s21, 127
    s_lshl_b32 s22, s22, 3
    s_lshl_b32 s23, s21, 3
"""
    return s
EPI = """
    s_memrealtime s[32:33]
    s_waitcnt lgkmcnt(0)
    s_sub_u32 s14, s14, s12
    s_sub_u32 s34, s34, s12
    s_sub_u32 s36, s36, s12
    s_mov_b32 s40, s26
    s_mov_b32 s41, s27
    s_mov_b32 s42, 0x100000
    s_mov_b32 s43, 0x20000
    s_lshl_b32 s21, s2, 3
    s_add_u32 s21, s21, s20
    s_lshl_b32 s21, s21, 5
    v_mov_b32 v2, s21
    v_mov_b32 v4, s36
    v_mov_b32 v5, s14
    v_mov_b32 v6, s34
    v_mov_b32 v7, s30
    v_mov_b32 v8, s32
    buffer_store_dwordx4 v[4:7], v2, s[40:43], 0 offen
    buffer_store_dword v8, v2, s[40:43], 0 offen offset:16
    s_waitcnt vmcnt(0)
"""
def strided(xcd, lanerows, nthreads=256, flags_ld="", flags_st=""):
    n = 2048 // nthreads
    s = PRO + mapping(xcd)
    if lanerows:
        sh = {8:13, 4:12}[n]
        s += f"    v_lshlrev_b32 v1, {sh}, v0\n"
        for i in range(n):
            s += f"    s_add_u32 s44, s22, {i*1024}\n    buffer_load_dwordx2 v[{10+2*i}:{11+2*i}], v1, s[8:11], s44 offen {flags_ld}\n"
    else:
        s += "    v_lshlrev_b32 v1, 10, v0\n"
        for i in range(n):
            s += f"    s_add_u32 s44, s22, {i*1024*nthreads}\n    buffer_load_dwordx2 v[{10+2*i}:{11+2*i}], v1, s[8:11], s44 offen {flags_ld}\n"
    s += "    s_waitcnt vmcnt(0)\n    s_barrier\n    s_memtime s[14:15]\n"
    s += "    v_lshlrev_b32 v1, 11, v0\n"
    for i in range(n):
        s += f"    s_add_u32 s44, s23, {i*2048*nthreads}\n    buffer_store_dwordx2 v[{10+2*i}:{11+2*i}], v1, s[16:19], s44 offen {flags_st}\n"
    s += "    s_waitcnt vmcnt(0)\n    s_memtime s[34:35]\n"
    return s + EPI
def coalesced():
    s = PRO + mapping(False)
    s += "    v_lshlrev_b32 v1, 4, v0\n    s_lshl_b32 s22, s22, 11\n    s_lshl_b32 s23, s23, 11\n"
    for i in range(4):
        s += f"    s_add_u32 s44, s22, {i*4096}\n    buffer_load_dwordx4 v[{12+4*i}:{15+4*i}], v1, s[8:11], s44 offen\n"
    s += "    s_waitcnt vmcnt(0)\n    s_barrier\n    s_memtime s[14:15]\n"
    for i in range(4):
        s += f"    s_add_u32 s44, s23, {i*4096}\n    buffer_store_dwordx4 v[{12+4*i}:{15+4*i}], v1, s[16:19], s44 offen\n"
    s += "    s_waitcnt vmcnt(0)\n    s_memtime s[34:35]\n"
    return s + EPI
def empty():
    return PRO + "    s_memtime s[14:15]\n    s_memtime s[34:35]\n" + EPI
T = {
 'empty': (empty(), 256),
 'coal': (coalesced(), 256),
 'str_x1_l1': (strided(True, True), 256),
 'str_x1_l0': (strided(True, False), 256),
 'str_x0_l1': (strided(False, True), 256),
 'str_x0_l0': (strided(False, False), 256),
 'str_x1_l1_512': (strided(True, True, 512), 512),
 'str_x1_l1_nt': (strided(True, True, 256, "nt", "nt"), 256),
 'str_x1_l1_sc1': (strided(True, True, 256, "sc1", "sc0"), 256),
}
names = list(T.keys())
if __name__ == '__main__':
    ks = [(f"k_{n}", T[n][0], 256) for n in names]
    if len(sys.argv) > 1 and sys.argv[1] == 'build':
        build('mb2.s', ks); print('ok'); sys.exit(0)
    co = assemble('mb2.s')
    import cdna_launch as cl
    hip = cl._hip
    bufs = [cl.DeviceBuffer(1 << 22) for _ in range(4)]
    big = cl.DeviceBuffer(512 << 20)
    ka = cl.pack_ptr_kernargs([b.ptr for b in bufs])
    for mode in ('warm', 'cold'):
      for n in names:
        k = cl.AsmKernel(co, f"k_{n}", check=False)
        blk = T[n][1]
        rows = []
        for it in range(8):
            if mode == 'cold':
                cl._check(hip.hipMemset(big.ptr, it, 512 << 20))
                cl._check(hip.hipDeviceSynchronize())
            k.launch((256,1,1), (blk,1,1), ka, 65536)
            cl._check(hip.hipDeviceSynchronize())
            o = bufs[3].to_numpy(np.uint32, (256, 8, 8))[:, :blk//64]
            t0 = o[..., 3].min()
            rows.append([np.median(o[...,0]), np.median(o[...,1]), o[...,1].max(), np.median(o[...,2]), o[...,2].max(), (o[...,3].max()-t0)*10, (o[...,4].max()-t0)*10])
        r = np.median(np.array(rows[2:]), 0)
        print(f"{mode} {n:16s} karg {r[0]:6.0f} ld med {r[1]:6.0f} max {r[2]:6.0f}  st med {r[3]:6.0f} max {r[4]:6.0f} cyc | start spread {r[5]:6.0f} ns, total {r[6]:6.0f} ns")
        k.unload()
```

```python
import sys, ctypes
sys.path.insert(0, 'work')
from mblib import *
from mb2 import PRO, EPI
def gen(kind):
    s = PRO + """
    s_mov_b32 s16, s24
    s_mov_b32 s17, s25
    s_mov_b32 s18, 0x400000
    s_mov_b32 s19, 0x20000
    s_and_b32 s22, s2, 7
    s_lshr_b32 s23, s2, 7
    s_and_b32 s46, s2, 0x70
    s_bfe_u32 s45, s2, 0x10003
    s_lshl_b32 s45, s45, 21
    v_lshlrev_b32 v1, 11, v0
"""
    if kind == 'pair8': s += "    s_lshl3_add_u32 s22, s23, s22\n"
    if kind == 'adj': s += "    s_lshl1_add_u32 s22, s22, s23\n"
    if kind == 'pair4': s += "    s_and_b32 s47, s22, 4\n    s_add_u32 s22, s22, s47\n    s_lshl2_add_u32 s22, s23, s22\n"
    if kind == 'pair2': s += "    s_and_b32 s47, s22, 6\n    s_add_u32 s22, s22, s47\n    s_lshl1_add_u32 s22, s23, s22\n"
    s += "    s_lshl_b32 s22, s22, 7\n    s_add_u32 s22, s22, s46\n    s_add_u32 s22, s22, s45\n"
    if kind == 'coal': s += "    v_lshlrev_b32 v1, 4, v0\n    s_lshl_b32 s22, s2, 13\n"
    if kind == 'coalx': s += "    v_lshlrev_b32 v1, 4, v0\n    s_and_b32 s22, s2, 7\n    s_lshl_b32 s22, s22, 18\n    s_lshr_b32 s23, s2, 3\n    s_lshl_b32 s23, s23, 13\n    s_add_u32 s22, s22, s23\n"
    st = (1 << 21) if kind.startswith('coal') else (1 << 20)
    if kind != 'none':
        for t in range(2):
            s += f"    s_add_u32 s44, s22, {t * st}\n    buffer_store_dwordx4 v[12:15], v1, s[16:19], s44 offen\n"
    s += "    s_waitcnt vmcnt(0)\nL_w" + kind + ":\n    s_memrealtime s[50:51]\n    s_waitcnt lgkmcnt(0)\n    s_sub_u32 s50, s50, s30\n    s_cmp_lt_u32 s50, 500\n    s_cbranch_scc1 L_w" + kind + "\n"
    return s
T = {k: gen(k) for k in ('none', 'pair8', 'adj', 'pair4', 'pair2', 'coal', 'coalx')}
names = list(T.keys())
if __name__ == '__main__':
    ks = [(f"k_{n}", T[n], 256) for n in names]
    if len(sys.argv) > 1 and sys.argv[1] == 'build':
        build('mb21.s', ks); print('ok'); sys.exit(0)
    co = assemble('mb21.s')
    import cdna_launch as cl
    hip = cl._hip
    bufs = [cl.DeviceBuffer(1 << 22) for _ in range(4)]
    big = cl.DeviceBuffer(640 << 20)
    fl = cl.AsmKernel('flush.co', 'k_flush', check=False)
    kaf = cl.pack_ptr_kernargs([big.ptr, 0, 0, 0])
    ka = cl.pack_ptr_kernargs([b.ptr for b in bufs])
    st = ctypes.c_void_p(); cl._check(hip.hipStreamCreateWithFlags(ctypes.byref(st), 1))
    e0, e1 = ctypes.c_void_p(), ctypes.c_void_p()
    cl._check(hip.hipEventCreate(ctypes.byref(e0))); cl._check(hip.hipEventCreate(ctypes.byref(e1)))
    K = [cl.AsmKernel(co, f"k_{n}", check=False) for n in names]
    R = [[] for _ in names]
    for it in range(400):
        for n in np.random.permutation(len(names)):
            fl.launch((10240,1,1), (256,1,1), kaf, 0, st)
            cl._check(hip.hipEventRecord(e0, st)); K[n].launch((256,1,1), (512,1,1), ka, 0, st); cl._check(hip.hipEventRecord(e1, st))
            cl._check(hip.hipEventSynchronize(e1))
            ms = ctypes.c_float(); cl._check(hip.hipEventElapsedTime(ctypes.byref(ms), e0, e1)); R[n].append(ms.value * 1e3)
    for n, nm in enumerate(names):
        t = np.sort(R[n][5:]); q = len(t) // 4
        print(nm, '%.3f' % t[q:-q].mean())
```
